```python
import torch

def _softmax(x, axis=-1):
    return torch.softmax(x, dim=axis)
def _gelu(x):
    return torch.nn.functional.gelu(x, approximate="tanh")
def _silu(x):
    return torch.nn.functional.silu(x)
def _sigmoid(x):
    return torch.sigmoid(x)
def _layernorm(x, axis=-1, eps=1e-5):
    m = x.mean(dim=axis, keepdim=True)
    v = x.var(dim=axis, keepdim=True, unbiased=False)
    return (x - m) / torch.sqrt(v + eps)
def _scatter_add(tgt, idx, src, axis=0):
    return tgt.clone().index_add_(axis, idx, src)
def _segment_sum(src, seg, n):
    out = torch.zeros((n,) + src.shape[1:], dtype=src.dtype)
    return out.index_add_(0, seg, src)
def _pad(x, pw):
    flat = tuple(v for pair in reversed(pw) for v in pair)
    return torch.nn.functional.pad(x, flat)

kernel_name = 'gated_mix__sliding_block_cached__dense_activation_silu__decode'

def setup_inputs():

    _w = (lambda a: (lambda t: t.to(torch.bfloat16) if t.is_floating_point() else t)(torch.as_tensor(a)))
    def _A_setup():
        B, Sq, D = 8, 1, 448
        Hq, Hkv, Sk, Dh = 16, 8, 4096, 256
        assert Hq % Hkv == 0, (Hq, Hkv)
        return {
            "x": _w((lambda *s: torch.randn(*s, dtype=torch.bfloat16) * 0.2)(B, Sq, D)),
            "k_cache": _w((lambda *s: torch.randn(*s, dtype=torch.bfloat16) * 3.2)(B, Hkv, Sk, Dh)),
            "v_cache": _w((lambda *s: torch.randn(*s, dtype=torch.bfloat16) * 3.2)(B, Hkv, Sk, Dh)),
            "wq": _w((lambda *s: torch.randn(*s, dtype=torch.bfloat16) * 3.2)(D, Hq * Dh) * (D ** -0.5)),
            "wo": _w((lambda *s: torch.randn(*s, dtype=torch.bfloat16) * 3.2)(Hq * Dh, D) * ((Hq * Dh) ** -0.5)),
        }
    _A_in = _A_setup()

    def _B_setup():
        B, S, D, F = 8, 1, 448, 1792
        return {
            "x": _w((lambda *s: torch.randn(*s, dtype=torch.bfloat16) * 0.2)(B, S, D)),
            "w1": _w((lambda *s: torch.randn(*s, dtype=torch.bfloat16) * 3.2)(D, F) * (D ** -0.5)),
            "w2": _w((lambda *s: torch.randn(*s, dtype=torch.bfloat16) * 3.2)(F, D) * (F ** -0.5)),
        }
    _B_in = _B_setup()

    return {
        "A_x": _A_in["x"],
        "A_k_cache": _A_in["k_cache"],
        "A_v_cache": _A_in["v_cache"],
        "A_wq": _A_in["wq"],
        "A_wo": _A_in["wo"],
        "B_x": _B_in["x"],
        "B_w1": _B_in["w1"],
        "B_w2": _B_in["w2"],
        "gate_w": _w((lambda *s: torch.randn(*s, dtype=torch.bfloat16) * 0.2)(448) * 16.0),
    }

def reference(A_x, A_k_cache, A_v_cache, A_wq, A_wo, B_x, B_w1, B_w2, gate_w):
    def _A_ref(x, k_cache, v_cache, wq, wo):
        B, Sq, D = x.shape
        Hq, Dh = 16, 256
        Hkv, Sk = k_cache.shape[1], k_cache.shape[2]
        W = min(4096, max(256, Sk // 4))
        rep = Hq // Hkv
        q = (lambda x, *d: x.permute(*d))((x @ wq).reshape(B, Sq, Hq, Dh), 0, 2, 1, 3)
        k = (lambda x, n, axis: torch.repeat_interleave(x, n, dim=axis))(k_cache[:, :, Sk - W:, :], rep, axis=1)
        v = (lambda x, n, axis: torch.repeat_interleave(x, n, dim=axis))(v_cache[:, :, Sk - W:, :], rep, axis=1)
        scores = torch.einsum("bhqd,bhkd->bhqk", q, k) * (Dh ** -0.5)
        p = _softmax(scores, axis=-1)
        o = torch.einsum("bhqk,bhkd->bhqd", p, v)
        return (lambda x, *d: x.permute(*d))(o, 0, 2, 1, 3).reshape(B, Sq, Hq * Dh) @ wo

    def _B_ref(x, w1, w2):
        h = torch.einsum("bsd,df->bsf", x, w1)
        h = _silu(h)
        out = torch.einsum("bsf,fd->bsd", h, w2)
        return out

    x = A_x
    g = _sigmoid((x * gate_w).sum(-1, keepdims=True))
    a = _A_ref(x, A_k_cache, A_v_cache, A_wq, A_wo)
    b = _B_ref(x, B_w1, B_w2)
    return g * a + (1 - g) * b
```

```python
import sys
NAME = "gated_mix__sliding_block_cached__dense_activation_silu__decode"

WOFF = 0
QP = 0x10000
HP = 0x90000
HF = 0x110000
ML = 0x120000
OP = 0x130000
FP = 0x1B0000
STAMP = 0x10000000
L_K = 8192
L_QB = 0
L_PB = L_QB + 1024
L_ZERO = L_PB + 1024
L_MISC = L_ZERO + 512
L_F = L_MISC
L_XQ = L_MISC + 16
L_SC = L_MISC + 32
L_W2F = L_MISC + 48
L_G = L_MISC + 64
L_M = L_MISC + 80
L_L = L_MISC + 112
L_W2R = L_MISC + 512
assert L_W2R + 2048 <= L_K
LDS_BYTES = L_K + 131072

OOB = 0x40000000
POLL_MAX = 200000

class E:
    def __init__(self):
        self.L = []
        self.n = 0
    def __call__(self, s):
        for x in s.split("\n"):
            x = x.strip()
            if x: self.L.append("    " + x)
    def label(self, s): self.L.append(s + ":")
    def newlabel(self, p="L"):
        self.n += 1
        return f"{p}_{self.n}"
    def srd(self, d, b, n):
        self(f"s_mov_b32 s{d}, s{b}\ns_mov_b32 s{d+1}, s{b+1}\ns_mov_b32 s{d+2}, {n}\ns_mov_b32 s{d+3}, 0x20000")

def vr(b, n=4): return f"v[{b}:{b+n-1}]"

def gen(D=6, diag=False, qgate=1, sleep_q=4, sleep_o=0, sleep_f=0, wpol=" nt"):
    A = E()
    S_TAG = 50; S_SELLO = 52; S_SELHI = 53; S_IT = 54
    NST = 8
    def stamp(k):
        if diag: A(f"s_memrealtime s[{70+2*k}:{71+2*k}]")
    def stamp_store(slot0, ks):
        if not diag: return
        A("s_waitcnt lgkmcnt(0)")
        A("s_mov_b64 exec, 1")
        for n, k in enumerate(ks):
            A(f"s_lshl_b32 s46, s2, 8\ns_add_u32 s46, s46, {STAMP + 8*(slot0+n)}\nv_mov_b32 v2, s46")
            A(f"v_mov_b32 v4, s{70+2*k}\nv_mov_b32 v5, s{71+2*k}")
            A("buffer_store_dwordx2 v[4:5], v2, s[40:43], 0 offen")
            A("s_nop 1")
        A("s_mov_b64 exec, -1")

    def lds_wait4(off, k, va, vz):
        l = A.newlabel("LW"); d = A.newlabel("LWD")
        A.label(l)
        A(f"ds_read_b128 {vr(va)}, v{vz} offset:{off}")
        A("s_waitcnt lgkmcnt(0)")
        A(f"v_min_u32 v{va}, v{va}, v{va+1}\nv_min3_u32 v{va}, v{va}, v{va+2}, v{va+3}\ns_nop 0")
        A(f"v_readfirstlane_b32 s46, v{va}\ns_nop 0")
        A(f"s_cmp_ge_u32 s46, {k}\ns_cbranch_scc1 {d}\ns_sleep 1\ns_branch {l}")
        A.label(d)
    def lds_wait1(vaddr, off, k, va):
        l = A.newlabel("LW"); d = A.newlabel("LWD")
        A.label(l)
        A(f"ds_read_b32 v{va}, v{vaddr} offset:{off}")
        A("s_waitcnt lgkmcnt(0)")
        A(f"v_readfirstlane_b32 s46, v{va}\ns_nop 0")
        A(f"s_cmp_ge_u32 s46, {k}\ns_cbranch_scc1 {d}\ns_sleep 1\ns_branch {l}")
        A.label(d)
    def perms_pair(L, T, a):
        for jj in range(4):
            lo = L + 4*(2*a) + jj; hi = L + 4*(2*a+1) + jj
            A(f"v_perm_b32 v{T + 4*(2*jj) + a}, v{hi}, v{lo}, s{S_SELLO}")
            A(f"v_perm_b32 v{T + 4*(2*jj+1) + a}, v{hi}, v{lo}, s{S_SELHI}")
    def perms(L, T):
        for a in range(4): perms_pair(L, T, a)
    def mfma8(acc, Areg, T, first):
        for c in range(8):
            cin = "0" if first else vr(acc + 4*c)
            A(f"v_mfma_f32_16x16x32_bf16 {vr(acc+4*c)}, {vr(Areg)}, {vr(T+4*c)}, {cin}")
    def extract8(acc, res, tmp, smask):
        for c in range(8):
            A(f"v_cndmask_b32 v{tmp+c}, v{acc+4*c+2}, v{acc+4*c+1}, s[{smask}:{smask+1}]")
            A(f"v_cndmask_b32 v{res+c}, v{acc+4*c+0}, v{acc+4*c+3}, s[{smask}:{smask+1}]")
        for c in range(8):
            A(f"v_add_f32_dpp v{res+c}, v{tmp+c}, v{res+c} row_ror:8 row_mask:0xf bank_mask:0xf")
    def tag(regs, vmask):
        for r in regs: A(f"v_and_or_b32 v{r}, v{r}, v{vmask}, s{S_TAG}")
    def msad(regs, vacc):
        for n, r in enumerate(regs):
            A(f"v_msad_u8 v{vacc}, v{r}, s{S_TAG}, {'0' if n == 0 else 'v'+str(vacc)}")
    def poll_tail(vacc, loop, sleep):
        d = A.newlabel("PD")
        A(f"v_cmp_ne_u32 vcc, 0, v{vacc}")
        A(f"s_add_u32 s{S_IT}, s{S_IT}, 1")
        A(f"s_cmp_ge_u32 s{S_IT}, {POLL_MAX}\ns_cbranch_scc1 {d}")
        A(f"s_cmp_eq_u64 vcc, 0\ns_cbranch_scc1 {d}")
        if sleep: A(f"s_sleep {sleep}")
        A(f"s_branch {loop}")
        A.label(d)
    def load_tag():
        A(f"s_load_dword s{S_TAG}, s[26:27], {WOFF}")
    def make_tag():
        A(f"s_and_b32 s{S_TAG}, s{S_TAG}, 0xff\ns_cmp_eq_u32 s{S_TAG}, 0xff\ns_cselect_b32 s{S_TAG}, 0, s{S_TAG}\ns_add_u32 s{S_TAG}, s{S_TAG}, 1")
    def allreduce2(a0, a1, t0, t1, op):
        A(f"v_mov_b32 v{t0}, v{a0}\nv_mov_b32 v{t1}, v{a1}\ns_nop 1")
        A(f"v_permlane32_swap_b32 v{t0}, v{t1}\ns_nop 1")
        A(f"{op} v{t0}, v{t0}, v{t1}\ns_nop 0\nv_mov_b32 v{t1}, v{t0}\ns_nop 1")
        A(f"v_permlane16_swap_b32 v{t0}, v{t1}\ns_nop 1")
        A(f"{op} v{t0}, v{t0}, v{t1}\ns_nop 1")
        for r in (1, 2, 4, 8):
            A(f"{op}_dpp v{t0}, v{t0}, v{t0} row_ror:{r} row_mask:0xf bank_mask:0xf\ns_nop 1")

    hdr = []
    hdr.append(f"; @launch grid=(256,1,1) block=(512,1,1) lds={LDS_BYTES}")
    hdr.append('.amdgcn_target "amdgcn-amd-amdhsa--gfx950"')
    hdr.append(".text"); hdr.append(f".globl {NAME}_kernel"); hdr.append(".p2align 8"); hdr.append(f".type {NAME}_kernel,@function")
    hdr.append(f"{NAME}_kernel:")

    A("s_cmp_ge_u32 s2, 256\ns_cbranch_scc1 L_END")
    stamp(0)
    A("s_load_dwordx16 s[4:19], s[0:1], 0")
    A("s_load_dwordx8 s[20:27], s[0:1], 64")
    A("v_lshrrev_b32 v1, 6, v0\nv_and_b32 v0, 63, v0")
    A("s_and_b32 s28, s2, 7")
    A("v_readfirstlane_b32 s3, v1")
    A("s_bfe_u32 s29, s2, 0x30003")
    A("s_lshr_b32 s30, s2, 6")
    A("s_lshl_b32 s31, s30, 3\ns_add_u32 s31, s31, s28")
    A(f"s_mov_b32 s{S_SELLO}, 0x05040100\ns_mov_b32 s{S_SELHI}, 0x07060302\ns_mov_b32 s{S_IT}, 0")
    A("s_mov_b32 s56, 0xff00ff00\ns_mov_b32 s57, 0xff00ff00")
    A("s_cmp_ge_u32 s3, 4\ns_cbranch_scc1 L_X")

    LB = [64, 96, 128, 160]; SP = 192
    TB = [SP, LB[0], LB[1], LB[2]]
    ACC = 12; AV = 20
    A("s_lshl_b32 s44, s29, 3\ns_add_u32 s44, s44, s28\ns_lshl_b32 s44, s44, 21\ns_add_u32 s44, s44, 0x180000")
    A("s_lshl_b32 s45, s30, 17\ns_add_u32 s44, s44, s45")
    A("s_lshl_b32 s58, s3, 15")
    A("s_add_u32 s59, s44, s58")
    A(f"s_add_u32 s58, s58, {L_K}")
    A("s_lshr_b32 s45, s2, 3\ns_add_u32 s45, s45, s2\ns_lshl_b32 s46, s3, 3\ns_add_u32 s45, s45, s46")
    A("v_lshrrev_b32 v1, 5, v0\nv_and_b32 v2, 31, v0\nv_xor_b32 v2, v2, v1\nv_lshlrev_b32 v2, 4, v2\nv_lshl_add_u32 v2, v1, 9, v2")
    A("v_lshrrev_b32 v1, 3, v0\nv_lshlrev_b32 v4, 12, v1\nv_and_b32 v1, 7, v0\nv_lshl_add_u32 v4, v1, 4, v4")
    A("s_lshl_b32 s46, s3, 7\nv_add_u32 v4, s46, v4")
    A("v_mov_b32 v10, 0")
    A("s_lshl_b32 s46, s3, 2\nv_mov_b32 v11, s46")
    A("s_waitcnt lgkmcnt(0)")
    A.srd(32, 6, 0x8000000)
    nissued = 0
    def throttle():
        if nissued >= D: A(f"s_waitcnt vmcnt({D-1})")
    for u in range(32):
        A(f"s_add_u32 s46, s45, {u}\ns_and_b32 s46, s46, 31\ns_lshl_b32 s47, s46, 10\ns_add_u32 s48, s47, s59\ns_add_u32 m0, s47, s58")
        A("s_lshl_b32 s49, s46, 5\ns_and_b32 s49, s49, 0xe0\nv_xor_b32 v3, s49, v2")
        A("buffer_load_dwordx4 v3, s[32:35], s48 offen nt lds")
        nissued += 1
        if u == min(D, 4) - 1:
            A.srd(36, 8, 0x8000000); A.srd(40, 26, 0x20000000)
            load_tag()
            A("s_barrier")
        throttle()
        if nissued - (D - 1) == 16:
            A(f"v_mov_b32 v9, 1\nds_write_b32 v11, v9 offset:{L_F}")
    done_pairs = 0
    def v_progress(complete):
        nonlocal done_pairs
        while (done_pairs + 1) * 2 <= complete:
            kb, a = divmod(done_pairs, 4)
            perms_pair(LB[kb], TB[kb], a)
            done_pairs += 1
    for n in range(32):
        kb, e = divmod(n, 8)
        if e == 0: A(f"s_add_u32 s48, s44, {kb*32768}")
        A(f"buffer_load_dwordx4 {vr(LB[kb] + 4*e)}, v4, s[36:39], s48 offen offset:{e*512} nt")
        nissued += 1
        throttle()
        comp = nissued - (D - 1)
        if comp == 32:
            A(f"v_mov_b32 v9, 2\nds_write_b32 v11, v9 offset:{L_F}")
            stamp(1)
        v_progress(comp - 32)
    A(f"v_mov_b32 v9, 3\nds_write_b32 v11, v9 offset:{L_F}")
    stamp(2)
    A("s_setprio 3")
    A("s_waitcnt lgkmcnt(0)")
    make_tag()
    A("v_and_b32 v1, 15, v0\nv_lshrrev_b32 v2, 4, v0")
    A("v_bfe_u32 v3, v1, 1, 1\nv_lshlrev_b32 v3, 9, v3")
    A("v_lshl_add_u32 v3, v2, 5, v3\nv_and_b32 v9, 1, v1\nv_lshl_add_u32 v3, v9, 4, v3")
    A(f"v_add_u32 v3, {L_PB}, v3\nv_mov_b32 v9, {L_ZERO}\nv_lshrrev_b32 v1, 2, v1")
    for q in range(4):
        A(f"v_cmp_eq_u32 vcc, {q}, v1\ns_nop 1\nv_cndmask_b32 v{5+q}, v9, v3, vcc")
    A("v_bfe_u32 v1, v0, 3, 1\nv_lshlrev_b32 v1, 15, v1")
    A("v_and_b32 v3, 7, v0\nv_lshl_add_u32 v1, v3, 5, v1\nv_lshl_add_u32 v1, v2, 3, v1")
    A("s_lshl_b32 s46, s28, 2\ns_lshr_b32 s47, s3, 1\ns_add_u32 s46, s46, s47\ns_lshl_b32 s46, s46, 14")
    A("s_lshl_b32 s47, s29, 11\ns_add_u32 s46, s46, s47\ns_lshl_b32 s47, s30, 9\ns_add_u32 s46, s46, s47")
    A(f"s_and_b32 s47, s3, 1\ns_lshl_b32 s47, s47, 8\ns_add_u32 s46, s46, s47\ns_add_u32 s60, s46, {OP}")
    A("v_mov_b32 v36, 0xffffff00")
    A(f"v_bfe_u32 v37, v0, 3, 1\nv_lshlrev_b32 v37, 2, v37")
    lds_wait4(L_XQ, 3, 40, 10)
    def pv(kb, first):
        for q in range(4): A(f"ds_read_b128 {vr(AV+4*q)}, v{5+q} offset:{kb*128}")
        for c in range(8):
            if c < 4: A(f"s_waitcnt lgkmcnt({3-c})")
            a = ACC + 4*(c >> 2)
            cin = "0" if (first and (c & 3) == 0) else vr(a)
            A(f"v_mfma_f32_16x16x32_bf16 {vr(a)}, {vr(AV+4*(c&3))}, {vr(TB[kb]+4*c)}, {cin}")
    assert D <= 9
    for kb in range(3):
        assert done_pairs >= 4*(kb+1)
        pv(kb, kb == 0)
    lds_wait1(10, L_SC, 1, 40)
    A(f"ds_read_b32 v38, v37 offset:{L_SC+8}")
    for w in range(D - 2, -1, -1):
        A(f"s_waitcnt vmcnt({w})")
        v_progress(32 - w)
    stamp(3)
    A("s_nop 1")
    pv(3, False)
    A("s_nop 7")
    for a in range(2):
        b_ = ACC + 4*a
        A(f"v_cndmask_b32 v{42+a}, v{b_+2}, v{b_+1}, s[56:57]")
        A(f"v_cndmask_b32 v{40+a}, v{b_+0}, v{b_+3}, s[56:57]")
    A("s_nop 0")
    for a in range(2):
        A(f"v_add_f32_dpp v{40+a}, v{42+a}, v{40+a} row_ror:8 row_mask:0xf bank_mask:0xf")
    A("v_mul_f32 v40, v40, v38\nv_mul_f32 v41, v41, v38")
    tag([40, 41], 36)
    A("buffer_store_dwordx2 v[40:41], v1, s[40:43], s60 offen sc1")
    stamp(4)
    if diag:
        A("s_cmp_lg_u32 s3, 0\ns_cbranch_scc1 L_END")
        stamp_store(0, [0, 1, 2, 3, 4])
    A("s_endpgm")

    A.label("L_X")
    A("s_setprio 3")
    A("s_sub_u32 s61, s3, 4")
    A("v_and_b32 v1, 7, v0\nv_lshrrev_b32 v2, 3, v0")
    A("v_and_b32 v5, 15, v0\nv_lshrrev_b32 v6, 4, v0")
    A("v_and_b32 v7, 1, v5\nv_lshl_add_u32 v7, v6, 1, v7")
    A("v_lshrrev_b32 v16, 1, v5")
    A("v_mov_b32 v17, 0\nv_mov_b32 v18, 0xffffff00")
    A(f"v_mov_b32 v19, {OOB}")
    A("v_mul_u32_u24 v4, 896, v16\nv_lshl_add_u32 v4, v7, 4, v4")
    A("v_cmp_eq_u32 vcc, 7, v7\ns_nop 1\nv_cndmask_b32 v4, v4, v19, vcc")
    A("v_cmp_eq_u32 s[62:63], 7, v2")
    A("s_waitcnt lgkmcnt(0)")
    A.srd(40, 26, 0x20000000); A.srd(32, 4, 7168)
    load_tag()
    XL = [64, 96, 128]; XT = [160, 192]; XACC = 224; XA = [8, 12]; XRES = 20; XTMP = 28
    A("s_cmp_eq_u32 s3, 5\ns_cbranch_scc1 L_X5\ns_cmp_eq_u32 s3, 6\ns_cbranch_scc1 L_X6\ns_cmp_eq_u32 s3, 7\ns_cbranch_scc1 L_X7")
    A.srd(36, 10, 448*4096*2)
    A("v_lshlrev_b32 v3, 16, v2\nv_lshl_add_u32 v3, v1, 4, v3\nv_cndmask_b32 v3, v3, v19, s[62:63]")
    A(f"s_mul_i32 s46, s30, {112*8192}\ns_lshl_b32 s47, s28, 3\ns_add_u32 s47, s47, s29\ns_lshl_b32 s47, s47, 7\ns_add_u32 s46, s46, s47")
    A("s_mul_i32 s47, s30, 224")
    for blk in range(2):
        for e in range(8):
            A(f"s_add_u32 s48, s46, {(56*blk+e)*8192}")
            A(f"buffer_load_dwordx4 {vr(XL[blk]+4*e)}, v3, s[36:39], s48 offen{wpol}")
        A(f"buffer_load_dwordx4 {vr(XA[blk])}, v4, s[32:35], s47 offen offset:{112*blk}")
    A("s_barrier")
    A("v_lshlrev_b32 v3, 16, v2\nv_lshl_add_u32 v3, v1, 5, v3")
    A("s_lshl_b32 s46, s28, 1\ns_lshr_b32 s47, s29, 2\ns_add_u32 s46, s46, s47\ns_lshl_b32 s46, s46, 12")
    A(f"s_lshl_b32 s47, s30, 10\ns_add_u32 s46, s46, s47\ns_and_b32 s47, s29, 3\ns_lshl_b32 s47, s47, 8\ns_add_u32 s46, s46, s47\ns_add_u32 s46, s46, {QP}")
    A("s_waitcnt vmcnt(9)")
    perms(XL[0], XT[0]); A("s_nop 1"); mfma8(XACC, XA[0], XT[0], True)
    A("s_waitcnt vmcnt(0)")
    perms(XL[1], XT[1]); A("s_nop 1"); mfma8(XACC, XA[1], XT[1], False)
    A("s_waitcnt lgkmcnt(0)"); make_tag(); A("s_nop 3")
    extract8(XACC, XRES, XTMP, 56)
    tag(range(XRES, XRES+8), 18)
    A(f"buffer_store_dwordx4 {vr(XRES)}, v3, s[40:43], s46 offen sc1")
    A(f"buffer_store_dwordx4 {vr(XRES+4)}, v3, s[40:43], s46 offen offset:16 sc1")
    stamp(1)
    A("s_branch L_XMID")
    A.label("L_X5")
    A.srd(36, 16, 448*1792*2)
    A(f"v_mul_u32_u24 v3, {8*3584}, v2\nv_lshl_add_u32 v3, v1, 4, v3\nv_cndmask_b32 v3, v3, v19, s[62:63]")
    A(f"s_mul_i32 s46, s29, {56*3584}\ns_lshl_b32 s47, s31, 7\ns_add_u32 s46, s46, s47")
    A("s_mul_i32 s47, s29, 112")
    A("s_cmp_ge_u32 s31, 28\ns_cbranch_scc1 L_X5S")
    for e in range(8):
        A(f"s_add_u32 s48, s46, {e*3584}")
        A(f"buffer_load_dwordx4 {vr(XL[0]+4*e)}, v3, s[36:39], s48 offen{wpol}")
    A(f"buffer_load_dwordx4 {vr(XA[0])}, v4, s[32:35], s47 offen")
    A("s_barrier")
    A("v_lshlrev_b32 v3, 11, v2\nv_lshl_add_u32 v3, v1, 5, v3")
    A(f"s_lshl_b32 s46, s31, 14\ns_lshl_b32 s47, s29, 8\ns_add_u32 s46, s46, s47\ns_add_u32 s46, s46, {HP}")
    A("s_waitcnt vmcnt(0)")
    perms(XL[0], XT[0]); A("s_nop 1"); mfma8(XACC, XA[0], XT[0], True)
    A("s_waitcnt lgkmcnt(0)"); make_tag(); A("s_nop 3")
    extract8(XACC, XRES, XTMP, 56)
    tag(range(XRES, XRES+8), 18)
    A(f"buffer_store_dwordx4 {vr(XRES)}, v3, s[40:43], s46 offen sc1")
    A(f"buffer_store_dwordx4 {vr(XRES+4)}, v3, s[40:43], s46 offen offset:16 sc1")
    A("s_branch L_XMID")
    A.label("L_X5S")
    A("s_barrier\ns_waitcnt lgkmcnt(0)"); make_tag()
    A("s_branch L_XMID")
    A.label("L_X6")
    A.srd(36, 20, 896)
    A("v_lshlrev_b32 v3, 4, v0\nv_cmp_gt_u32 vcc, 56, v0\ns_nop 1\nv_cndmask_b32 v3, v19, v3, vcc")
    A("s_mul_i32 s47, s29, 896")
    A("buffer_load_dwordx4 v[8:11], v3, s[32:35], s47 offen")
    A("buffer_load_dwordx4 v[12:15], v3, s[36:39], 0 offen")
    A("s_barrier")
    A("s_waitcnt vmcnt(0)")
    A("v_mov_b32 v20, 0")
    for k in range(4):
        A(f"v_lshlrev_b32 v21, 16, v{8+k}\nv_and_b32 v22, 0xffff0000, v{8+k}\nv_lshlrev_b32 v23, 16, v{12+k}\nv_and_b32 v24, 0xffff0000, v{12+k}")
        A("v_mul_f32 v21, v21, v23\nv_mul_f32 v22, v22, v24\nv_cvt_pk_bf16_f32 v21, v21, v22")
        A("v_lshlrev_b32 v22, 16, v21\nv_and_b32 v21, 0xffff0000, v21\nv_add_f32 v20, v20, v22\nv_add_f32 v20, v20, v21")
    allreduce2(20, 20, 21, 22, "v_add_f32")
    A("v_cvt_pk_bf16_f32 v21, v21, v21\nv_lshlrev_b32 v21, 16, v21")
    A("v_mul_f32 v21, 0xbfb8aa3b, v21\nv_exp_f32 v21, v21\ns_nop 0\nv_add_f32 v21, 1.0, v21\nv_rcp_f32 v21, v21\ns_nop 0")
    A("v_cvt_pk_bf16_f32 v21, v21, v21\nv_lshlrev_b32 v22, 16, v21")
    A("v_sub_f32 v23, 1.0, v22\nv_cvt_pk_bf16_f32 v23, v23, v23\nv_lshlrev_b32 v23, 16, v23")
    A(f"ds_write_b64 v17, v[22:23] offset:{L_G}")
    A("s_waitcnt lgkmcnt(0)"); make_tag()
    A("s_branch L_XMID")
    A.label("L_X7")
    A("v_lshlrev_b32 v3, 4, v0\nv_mov_b32 v8, 0\nv_mov_b32 v9, 0\nv_mov_b32 v10, 0\nv_mov_b32 v11, 0")
    A(f"ds_write_b128 v3, v[8:11] offset:{L_ZERO}")
    A("s_waitcnt lgkmcnt(0)\ns_barrier")
    make_tag()

    A.label("L_XMID")
    A("s_lshl_b32 s46, s61, 2\nv_mov_b32 v36, s46")
    A("s_lshl_b32 s46, s29, 4\ns_lshl_b32 s47, s28, 1\ns_add_u32 s46, s46, s47\ns_lshr_b32 s47, s61, 1\ns_add_u32 s46, s46, s47\ns_lshl_b32 s46, s46, 12")
    A(f"s_and_b32 s47, s61, 1\ns_lshl_b32 s47, s47, 9\ns_add_u32 s46, s46, s47\ns_add_u32 s60, s46, {QP}")
    A("v_lshlrev_b32 v3, 3, v0")
    A(f"s_lshl_b32 s46, s61, 8\ns_add_u32 s46, s46, {L_QB}\nv_lshlrev_b32 v37, 2, v0\nv_add_u32 v37, s46, v37")
    if qgate: lds_wait1(36, L_F, qgate, 40)
    stamp(2)
    lp = A.newlabel("QPOLL"); A.label(lp)
    for r in range(4): A(f"buffer_load_dwordx2 v[{40+2*r}:{41+2*r}], v3, s[40:43], s60 offen offset:{r*1024} sc1")
    A("s_waitcnt vmcnt(0)")
    msad(range(40, 48), 38)
    poll_tail(38, lp, sleep_q)
    A("v_add_f32 v40, v40, v42\nv_add_f32 v41, v41, v43\nv_add_f32 v44, v44, v46\nv_add_f32 v45, v45, v47\nv_add_f32 v40, v40, v44\nv_add_f32 v41, v41, v45")
    A("v_cvt_pk_bf16_f32 v40, v40, v41\nds_write_b32 v37, v40")
    A(f"v_mov_b32 v38, 1\ns_waitcnt lgkmcnt(0)\nds_write_b32 v36, v38 offset:{L_XQ}")
    stamp(3)
    A("v_xor_b32 v39, v6, v5\nv_lshlrev_b32 v39, 4, v39\nv_lshl_add_u32 v39, v5, 9, v39\ns_lshl_b32 s46, s61, 15\ns_add_u32 s46, s46, 8192\nv_add_u32 v48, s46, v39")
    A("v_xor_b32 v49, 64, v48\nv_xor_b32 v50, 0x80, v48\nv_xor_b32 v51, 0xc0, v48")
    A(f"v_and_b32 v39, 1, v5\nv_lshlrev_b32 v39, 9, v39\nv_lshl_add_u32 v39, v6, 4, v39")
    lds_wait4(L_XQ, 1, 40, 17)
    QA = 64; KB_ = 96; SACC = 224
    for t in range(8): A(f"ds_read_b128 {vr(QA+4*t)}, v39 offset:{L_QB + 64*t}")
    lds_wait1(36, L_F, 2, 40)
    stamp(4)
    order = [(tau, t) for t in range(8) for tau in range(4)]
    def kread(n):
        tau, t = order[n]
        A(f"ds_read_b128 {vr(KB_+4*n)}, v{48+(t&3)} offset:{(t>>2)*256 + tau*8192}")
    INF = 8
    for n in range(INF): kread(n)
    for n in range(32):
        tau, t = order[n]
        rem = min(INF - 1, 31 - n)
        A(f"s_waitcnt lgkmcnt({rem})")
        cin = "0" if t == 0 else vr(SACC+4*tau)
        A(f"v_mfma_f32_16x16x32_bf16 {vr(SACC+4*tau)}, {vr(QA+4*t)}, {vr(KB_+4*n)}, {cin}")
        if n + INF < 32: kread(n + INF)
    A("v_cmp_eq_u32 s[64:65], 1, v6\nv_cmp_eq_u32 s[66:67], 2, v6\nv_cmp_eq_u32 s[68:69], 3, v6\ns_nop 5")
    for h in range(2):
        A(f"v_cndmask_b32 v{40+h}, v{SACC+h}, v{SACC+4+h}, s[64:65]")
        A(f"v_cndmask_b32 v{40+h}, v{40+h}, v{SACC+8+h}, s[66:67]")
        A(f"v_cndmask_b32 v{40+h}, v{40+h}, v{SACC+12+h}, s[68:69]")
    allreduce2(40, 41, 42, 43, "v_max_f32")
    A(f"v_lshrrev_b32 v44, 5, v0\nv_lshlrev_b32 v44, 2, v44\ns_lshl_b32 s46, s61, 3\nv_add_u32 v44, s46, v44")
    A(f"ds_write_b32 v44, v42 offset:{L_M}")
    A(f"v_mov_b32 v38, 2\ns_waitcnt lgkmcnt(0)\nds_write_b32 v36, v38 offset:{L_XQ}")
    lds_wait4(L_XQ, 2, 52, 17)
    A(f"ds_read_b128 v[52:55], v17 offset:{L_M}\nds_read_b128 v[56:59], v17 offset:{L_M+16}\ns_waitcnt lgkmcnt(0)")
    A("v_max_f32 v52, v52, v54\nv_max3_f32 v52, v52, v56, v58\nv_max_f32 v53, v53, v55\nv_max3_f32 v53, v53, v57, v59")
    A("s_mov_b32 s47, 0x3db8aa3b")
    A("v_sub_f32 v40, v40, v52\nv_sub_f32 v41, v41, v53\nv_mul_f32 v40, s47, v40\nv_mul_f32 v41, s47, v41\nv_exp_f32 v40, v40\nv_exp_f32 v41, v41\ns_nop 0")
    A(f"v_cvt_pk_bf16_f32 v45, v40, v41\ns_lshl_b32 s46, s61, 7\ns_add_u32 s46, s46, {L_PB}\nv_lshlrev_b32 v46, 1, v0\nv_add_u32 v46, s46, v46")
    A("ds_write_b16 v46, v45\nds_write_b16_d16_hi v46, v45 offset:512")
    allreduce2(40, 41, 42, 43, "v_add_f32")
    A(f"ds_write_b32 v44, v42 offset:{L_L}")
    A(f"v_mov_b32 v38, 3\ns_waitcnt lgkmcnt(0)\nds_write_b32 v36, v38 offset:{L_XQ}")
    stamp(5)
    A("s_cmp_eq_u32 s3, 5\ns_cbranch_scc1 L_Y5\ns_cmp_eq_u32 s3, 6\ns_cbranch_scc1 L_Y6\ns_cmp_eq_u32 s3, 7\ns_cbranch_scc1 L_Y7")

    A("s_cmp_eq_u32 s29, 7\ns_cbranch_scc1 L_Y4END")
    A.srd(36, 12, 4096*448*2)
    A("v_mul_u32_u24 v3, 7168, v2\nv_lshl_add_u32 v3, v1, 4, v3")
    A("s_lshl_b32 s58, s28, 2\ns_add_u32 s58, s58, s30")
    A(f"s_mul_i32 s46, s58, {128*896}\ns_lshl_b32 s47, s29, 7\ns_add_u32 s59, s46, s47")
    A("v_lshlrev_b32 v4, 11, v16\nv_lshl_add_u32 v4, v7, 5, v4")
    A(f"s_lshl_b32 s60, s58, 14\ns_add_u32 s60, s60, {OP}")
    A(f"v_mul_u32_u24 v36, {28*2048}, v2\nv_lshrrev_b32 v37, 1, v1\nv_lshl_add_u32 v36, v37, 11, v36\nv_and_b32 v37, 1, v1\nv_lshl_add_u32 v36, v37, 5, v36")
    A(f"s_lshl_b32 s46, s29, 13\ns_lshl_b32 s47, s58, 6\ns_add_u32 s46, s46, s47\ns_add_u32 s62, s46, {FP}")
    A(f"s_mul_i32 s46, s28, 28\ns_lshl_b32 s47, s29, 2\ns_add_u32 s46, s46, s47\ns_add_u32 s46, s46, s30\ns_lshl_b32 s63, s46, 11\ns_add_u32 s63, s63, {FP}")
    A("v_lshlrev_b32 v37, 4, v0")
    A("v_lshlrev_b32 v38, 5, v0")
    lds_wait4(L_F, 3, 40, 17)
    WL = [64, 96]; WT = [128, 64]; G0 = 160
    for blk in range(2):
        A(f"s_add_u32 s46, s59, {blk*64*896}\ns_add_u32 s47, s46, 3584")
        for e in range(8):
            A(f"buffer_load_dwordx4 {vr(WL[blk]+4*e)}, v3, s[36:39], s{46 + (e&1)} offen offset:{(e>>1)*896}{wpol}")
    A("s_waitcnt vmcnt(8)")
    perms(WL[0], WT[0])
    A("s_waitcnt vmcnt(0)")
    perms(WL[1], WT[1])
    stamp(6)
    lp = A.newlabel("OPOLL"); A.label(lp)
    for blk in range(2):
        for s_ in range(4):
            for hh in range(2):
                A(f"buffer_load_dwordx4 {vr(G0 + blk*32 + s_*8 + hh*4)}, v4, s[40:43], s60 offen offset:{s_*512 + blk*256 + hh*16} sc1")
    A("s_waitcnt vmcnt(0)")
    msad(range(G0, G0+64), 39)
    poll_tail(39, lp, sleep_o)
    stamp(7)
    for blk in range(2):
        g = G0 + blk*32
        for k in range(8):
            A(f"v_add_f32 v{g+k}, v{g+k}, v{g+8+k}\nv_add_f32 v{g+16+k}, v{g+16+k}, v{g+24+k}")
        for k in range(8): A(f"v_add_f32 v{g+k}, v{g+k}, v{g+16+k}")
        for k in range(4): A(f"v_cvt_pk_bf16_f32 v{XA[blk]+k}, v{g+2*k}, v{g+2*k+1}")
        A("s_nop 1")
        mfma8(XACC, XA[blk], WT[blk], blk == 0)
    lds_wait1(17, L_W2F, 1, 40)
    A(f"ds_read_b128 v[40:43], v38 offset:{L_W2R}\nds_read_b128 v[44:47], v38 offset:{L_W2R+16}")
    A("s_nop 4")
    extract8(XACC, XRES, XTMP, 56)
    A("s_waitcnt lgkmcnt(0)")
    for k in range(8): A(f"v_add_f32 v{XRES+k}, v{XRES+k}, v{40+k}")
    tag(range(XRES, XRES+8), 18)
    A(f"buffer_store_dwordx4 {vr(XRES)}, v36, s[40:43], s62 offen sc1")
    A(f"buffer_store_dwordx4 {vr(XRES+4)}, v36, s[40:43], s62 offen offset:16 sc1")
    if diag: A("s_memrealtime s[86:87]")
    A.srd(36, 22, 7168)
    A("v_and_b32 v3, 3, v0\nv_lshlrev_b32 v3, 2, v3\nv_and_b32 v4, 1, v6\nv_lshl_add_u32 v3, v4, 1, v3\nv_lshrrev_b32 v4, 1, v6\nv_add_u32 v3, v3, v4\nv_lshlrev_b32 v3, 1, v3")
    A("v_cmp_gt_u32 vcc, 4, v5\ns_nop 1\nv_cndmask_b32 v3, v19, v3, vcc")
    A("s_mul_i32 s46, s28, 896\ns_lshl_b32 s47, s29, 7\ns_add_u32 s46, s46, s47\ns_lshl_b32 s47, s30, 5\ns_add_u32 s59, s46, s47")
    lp = A.newlabel("FPOLL"); A.label(lp)
    A("buffer_load_dwordx4 v[40:43], v37, s[40:43], s63 offen sc1\nbuffer_load_dwordx4 v[44:47], v37, s[40:43], s63 offen offset:1024 sc1")
    A("s_waitcnt vmcnt(0)")
    msad(range(40, 48), 39)
    poll_tail(39, lp, sleep_f)
    for k in range(4): A(f"v_add_f32 v{40+k}, v{40+k}, v{44+k}")
    A("s_nop 1\nv_permlane32_swap_b32 v40, v41\nv_permlane32_swap_b32 v42, v43\ns_nop 1")
    A("v_add_f32 v40, v40, v41\nv_add_f32 v42, v42, v43\ns_nop 1\nv_permlane16_swap_b32 v40, v42\ns_nop 1\nv_add_f32 v40, v40, v42\ns_nop 1")
    A("v_add_f32_dpp v40, v40, v40 row_ror:4 row_mask:0xf bank_mask:0xf\ns_nop 1")
    A("v_add_f32_dpp v40, v40, v40 row_ror:8 row_mask:0xf bank_mask:0xf")
    A("v_cvt_pk_bf16_f32 v40, v40, v40")
    A("buffer_store_short v40, v3, s[36:39], s59 offen")
    A("s_cmp_lg_u32 s2, 0\ns_cbranch_scc1 L_Y4END")
    A(f"v_mov_b32 v40, s{S_TAG}\nv_cmp_eq_u32 vcc, 0, v0\ns_nop 1\nv_cndmask_b32 v3, v19, v17, vcc")
    A(f"buffer_store_dword v40, v3, s[40:43], 0 offen offset:{WOFF}")
    A.label("L_Y4END")
    if diag:
        A("s_memrealtime s[88:89]")
        stamp_store(8, [1, 2, 3, 4, 5, 6, 7, 8, 9])
    A("s_endpgm")

    A.label("L_Y5")
    A("s_cmp_ge_u32 s31, 28\ns_cbranch_scc1 L_END")
    A(f"s_lshl_b32 s46, s31, 14\ns_lshl_b32 s47, s29, 11\ns_add_u32 s46, s46, s47\ns_add_u32 s60, s46, {HP}")
    A(f"s_lshl_b32 s46, s31, 11\ns_lshl_b32 s47, s29, 8\ns_add_u32 s46, s46, s47\ns_add_u32 s59, s46, {HF}")
    A("v_lshlrev_b32 v3, 2, v0")
    A(f"ds_read_b64 v[52:53], v17 offset:{L_G}")
    lp = A.newlabel("HPOLL"); A.label(lp)
    for r in range(8): A(f"buffer_load_dword v{40+r}, v3, s[40:43], s60 offen offset:{r*256} sc1")
    A("s_waitcnt vmcnt(0) lgkmcnt(0)")
    msad(range(40, 48), 39)
    poll_tail(39, lp, 8)
    A("v_add_f32 v40, v40, v41\nv_add_f32 v42, v42, v43\nv_add_f32 v44, v44, v45\nv_add_f32 v46, v46, v47\nv_add_f32 v40, v40, v42\nv_add_f32 v44, v44, v46\nv_add_f32 v40, v40, v44")
    A("v_cvt_pk_bf16_f32 v40, v40, v40\nv_lshlrev_b32 v40, 16, v40")
    A("v_mul_f32 v41, 0xbfb8aa3b, v40\nv_exp_f32 v41, v41\ns_nop 0\nv_add_f32 v41, 1.0, v41\nv_rcp_f32 v41, v41\ns_nop 0\nv_mul_f32 v40, v40, v41")
    A("v_cvt_pk_bf16_f32 v40, v40, v40\nv_lshlrev_b32 v40, 16, v40\nv_mul_f32 v40, v40, v53")
    tag([40], 18)
    A("buffer_store_dword v40, v3, s[40:43], s59 offen sc1")
    A("s_endpgm")

    A.label("L_Y6")
    lds_wait4(L_XQ, 3, 40, 17)
    A(f"ds_read_b128 v[40:43], v17 offset:{L_L}\nds_read_b128 v[44:47], v17 offset:{L_L+16}\nds_read_b64 v[60:61], v17 offset:{L_G}\ns_waitcnt lgkmcnt(0)")
    A("v_add_f32 v40, v40, v42\nv_add_f32 v44, v44, v46\nv_add_f32 v40, v40, v44\nv_add_f32 v41, v41, v43\nv_add_f32 v45, v45, v47\nv_add_f32 v41, v41, v45")
    A("v_and_b32 v42, 1, v0\nv_cmp_eq_u32 vcc, 1, v42\ns_nop 1\nv_cndmask_b32 v44, v52, v53, vcc\nv_cndmask_b32 v46, v40, v41, vcc")
    A("v_lshlrev_b32 v45, 8, v44\nv_mov_b32 v47, v46")
    tag([44, 45, 46, 47], 18)
    A(f"s_lshl_b32 s46, s29, 3\ns_add_u32 s46, s46, s28\ns_lshl_b32 s46, s46, 8\ns_add_u32 s60, s46, {ML}\ns_lshl_b32 s47, s30, 6\ns_add_u32 s59, s60, s47")
    A("v_lshlrev_b32 v3, 4, v0\nv_cmp_gt_u32 vcc, 4, v0\ns_nop 1\nv_cndmask_b32 v4, v19, v3, vcc")
    A("buffer_store_dwordx4 v[44:47], v4, s[40:43], s59 offen sc1")
    A("v_and_b32 v3, 0xff, v3")
    lp = A.newlabel("MPOLL"); A.label(lp)
    A("buffer_load_dwordx4 v[44:47], v3, s[40:43], s60 offen sc1")
    A("s_waitcnt vmcnt(0)")
    msad(range(44, 48), 39)
    poll_tail(39, lp, 8)
    A("v_bfe_u32 v45, v45, 8, 8\nv_and_or_b32 v44, v44, v18, v45")
    A("v_mov_b32 v48, v44\ns_nop 1\nv_max_f32_dpp v48, v48, v48 row_ror:4 row_mask:0xf bank_mask:0xf\ns_nop 1\nv_max_f32_dpp v48, v48, v48 row_ror:8 row_mask:0xf bank_mask:0xf")
    A("s_mov_b32 s47, 0x3db8aa3b")
    A("v_sub_f32 v44, v44, v48\nv_mul_f32 v44, s47, v44\nv_exp_f32 v44, v44\ns_nop 0\nv_mul_f32 v46, v46, v44\ns_nop 1")
    A("v_add_f32_dpp v46, v46, v46 row_ror:4 row_mask:0xf bank_mask:0xf\ns_nop 1\nv_add_f32_dpp v46, v46, v46 row_ror:8 row_mask:0xf bank_mask:0xf")
    A("v_cmp_eq_u32 vcc, 1, v42\ns_nop 1\nv_cndmask_b32 v44, v52, v53, vcc")
    A("v_sub_f32 v44, v44, v48\nv_mul_f32 v44, s47, v44\nv_exp_f32 v44, v44\nv_rcp_f32 v46, v46\ns_nop 0\nv_mul_f32 v44, v44, v46\nv_mul_f32 v44, v44, v60")
    A(f"v_lshlrev_b32 v42, 2, v42\nds_write_b32 v42, v44 offset:{L_SC+8}")
    A(f"v_mov_b32 v38, 1\ns_waitcnt lgkmcnt(0)\nds_write_b32 v17, v38 offset:{L_SC}")
    if diag:
        stamp(6)
        stamp_store(20, [6])
    A("s_endpgm")

    A.label("L_Y7")
    A("s_cmp_eq_u32 s29, 7\ns_cbranch_scc1 L_END")
    A("v_lshlrev_b32 v38, 5, v0")
    A("s_cmp_ge_u32 s31, 28\ns_cbranch_scc1 L_Y7Z")
    A.srd(36, 18, 1792*448*2)
    A("v_mul_u32_u24 v3, 7168, v2\nv_lshl_add_u32 v3, v1, 4, v3")
    A(f"s_mul_i32 s46, s31, {64*896}\ns_lshl_b32 s47, s29, 7\ns_add_u32 s58, s46, s47\ns_add_u32 s59, s58, 3584")
    A("v_lshlrev_b32 v4, 8, v16\nv_lshl_add_u32 v4, v7, 5, v4")
    A(f"s_lshl_b32 s60, s31, 11\ns_add_u32 s60, s60, {HF}")
    lds_wait4(L_F, 3, 40, 17)
    for e in range(8):
        A(f"buffer_load_dwordx4 {vr(64+4*e)}, v3, s[36:39], s{58 + (e>>2)} offen offset:{(e&3)*896}{wpol}")
    lp = A.newlabel("H2POLL"); A.label(lp)
    A("buffer_load_dwordx4 v[40:43], v4, s[40:43], s60 offen sc1\nbuffer_load_dwordx4 v[44:47], v4, s[40:43], s60 offen offset:16 sc1")
    A("s_waitcnt vmcnt(0)")
    msad(range(40, 48), 39)
    poll_tail(39, lp, 4)
    for k in range(4): A(f"v_cvt_pk_bf16_f32 v{8+k}, v{40+2*k}, v{41+2*k}")
    perms(64, 96); A("s_nop 1")
    mfma8(XACC, 8, 96, True)
    A("s_nop 7")
    extract8(XACC, XRES, XTMP, 56)
    A.label("L_Y7W")
    A(f"ds_write_b128 v38, {vr(XRES)} offset:{L_W2R}\nds_write_b128 v38, {vr(XRES+4)} offset:{L_W2R+16}")
    A(f"v_mov_b32 v39, 1\ns_waitcnt lgkmcnt(0)\nds_write_b32 v17, v39 offset:{L_W2F}")
    A("s_endpgm")
    A.label("L_Y7Z")
    for k in range(8): A(f"v_mov_b32 v{XRES+k}, 0")
    A("s_branch L_Y7W")

    A.label("L_END")
    A("s_endpgm")
    tail = ['.section .rodata,"a"', ".p2align 6", f".amdhsa_kernel {NAME}_kernel",
            "  .amdhsa_next_free_vgpr 256", "  .amdhsa_next_free_sgpr 96", "  .amdhsa_accum_offset 256",
            "  .amdhsa_group_segment_fixed_size 0", "  .amdhsa_kernarg_size 96", "  .amdhsa_user_sgpr_count 2",
            "  .amdhsa_user_sgpr_kernarg_segment_ptr 1", "  .amdhsa_system_sgpr_workgroup_id_x 1",
            "  .amdhsa_float_denorm_mode_32 3", ".end_amdhsa_kernel"]
    return "\n".join(hdr + A.L + tail) + "\n"

if __name__ == "__main__":
    import argparse
    ap = argparse.ArgumentParser()
    ap.add_argument("-o", default="k.s")
    ap.add_argument("--D", type=int, default=6)
    ap.add_argument("--diag", action="store_true")
    ap.add_argument("--qgate", type=int, default=1)
    a = ap.parse_args()
    open(a.o, "w").write(gen(D=a.D, diag=a.diag, qgate=a.qgate))
```

```python
import sys
NAME = "gated_mix__sliding_block_cached__dense_activation_silu__decode"

import os
XB = int(os.environ.get("XB", "0"), 0)
WOFF = 0
QP = XB + 0x1000
HP = QP + 0x80000
HF = HP + 0x70000
ML = HF + 0xE000
OP = ML + 0x4000
FP = OP + 0x80000
assert FP + 0x70000 <= XB + 0x200000
STAMP = 0x10000000
L_K = 8192
L_QB = 0
L_PB = L_QB + 1024
L_ZERO = L_PB + 1024
L_MISC = L_ZERO + 512
L_F = L_MISC
L_XQ = L_MISC + 16
L_SC = L_MISC + 32
L_W2F = L_MISC + 48
L_G = L_MISC + 64
L_M = L_MISC + 80
L_L = L_MISC + 112
L_W2R = L_MISC + 512
assert L_W2R + 2048 <= L_K
LDS_BYTES = L_K + 131072

OOB = 0x40000000
POLL_MAX = 200000

class E:
    def __init__(self):
        self.L = []
        self.n = 0
    def __call__(self, s):
        for x in s.split("\n"):
            x = x.strip()
            if x: self.L.append("    " + x)
    def label(self, s): self.L.append(s + ":")
    def newlabel(self, p="L"):
        self.n += 1
        return f"{p}_{self.n}"
    def srd(self, d, b, n):
        self(f"s_mov_b32 s{d}, s{b}\ns_mov_b32 s{d+1}, s{b+1}\ns_mov_b32 s{d+2}, {n}\ns_mov_b32 s{d+3}, 0x20000")

def vr(b, n=4): return f"v[{b}:{b+n-1}]"

def gen(D=6, diag=False, qgate=1, sleep_q=4, sleep_o=0, sleep_f=0, wpol=" nt", VT=32, rotm=0, so=False, mapm=0, abl=0, est=0, kvpol=" nt"):
    A = E()
    S_TAG = 50; S_SELLO = 52; S_SELHI = 53; S_IT = 54
    NST = 8
    def stamp(k):
        if diag: A(f"s_memrealtime s[{80+2*k}:{81+2*k}]")
    def stamp_store(slot0, ks, wavemul=0):
        if not diag: return
        A("s_waitcnt lgkmcnt(0)")
        A("s_mov_b64 exec, 1")
        for n, k in enumerate(ks):
            A(f"s_lshl_b32 s46, s2, 9\ns_add_u32 s46, s46, {STAMP + 8*(slot0+n)}\ns_mul_i32 s47, s3, {8*wavemul}\ns_add_u32 s46, s46, s47\nv_mov_b32 v2, s46")
            A(f"v_mov_b32 v4, s{80+2*k}\nv_mov_b32 v5, s{81+2*k}")
            A("buffer_store_dwordx2 v[4:5], v2, s[40:43], 0 offen")
            A("s_nop 1")
        A("s_mov_b64 exec, -1")

    def lds_wait4(off, k, va, vz):
        l = A.newlabel("LW"); d = A.newlabel("LWD")
        A.label(l)
        A(f"ds_read_b128 {vr(va)}, v{vz} offset:{off}")
        A("s_waitcnt lgkmcnt(0)")
        A(f"v_min_u32 v{va}, v{va}, v{va+1}\nv_min3_u32 v{va}, v{va}, v{va+2}, v{va+3}\ns_nop 0")
        A(f"v_readfirstlane_b32 s46, v{va}\ns_nop 0")
        A(f"s_cmp_ge_u32 s46, {k}\ns_cbranch_scc1 {d}\ns_sleep 1\ns_branch {l}")
        A.label(d)
    def lds_wait1(vaddr, off, k, va):
        l = A.newlabel("LW"); d = A.newlabel("LWD")
        A.label(l)
        A(f"ds_read_b32 v{va}, v{vaddr} offset:{off}")
        A("s_waitcnt lgkmcnt(0)")
        A(f"v_readfirstlane_b32 s46, v{va}\ns_nop 0")
        A(f"s_cmp_ge_u32 s46, {k}\ns_cbranch_scc1 {d}\ns_sleep 1\ns_branch {l}")
        A.label(d)
    def perms_pair(L, T, a):
        for jj in range(4):
            lo = L + 4*(2*a) + jj; hi = L + 4*(2*a+1) + jj
            A(f"v_perm_b32 v{T + 4*(2*jj) + a}, v{hi}, v{lo}, s{S_SELLO}")
            A(f"v_perm_b32 v{T + 4*(2*jj+1) + a}, v{hi}, v{lo}, s{S_SELHI}")
    def perms(L, T):
        for a in range(4): perms_pair(L, T, a)
    def mfma8(acc, Areg, T, first):
        for c in range(8):
            cin = "0" if first else vr(acc + 4*c)
            A(f"v_mfma_f32_16x16x32_bf16 {vr(acc+4*c)}, {vr(Areg)}, {vr(T+4*c)}, {cin}")
    def extract8(acc, res, tmp, smask):
        for c in range(8):
            A(f"v_cndmask_b32 v{tmp+c}, v{acc+4*c+2}, v{acc+4*c+1}, s[{smask}:{smask+1}]")
            A(f"v_cndmask_b32 v{res+c}, v{acc+4*c+0}, v{acc+4*c+3}, s[{smask}:{smask+1}]")
        for c in range(8):
            A(f"v_add_f32_dpp v{res+c}, v{tmp+c}, v{res+c} row_ror:8 row_mask:0xf bank_mask:0xf")
    def tag(regs, vmask):
        for r in regs: A(f"v_and_or_b32 v{r}, v{r}, v{vmask}, s{S_TAG}")
    def msad(regs, vacc):
        for n, r in enumerate(regs):
            A(f"v_msad_u8 v{vacc}, v{r}, s{S_TAG}, {'0' if n == 0 else 'v'+str(vacc)}")
    def poll_tail(vacc, loop, sleep):
        d = A.newlabel("PD")
        A(f"v_cmp_ne_u32 vcc, 0, v{vacc}")
        A(f"s_add_u32 s{S_IT}, s{S_IT}, 1")
        A(f"s_cmp_ge_u32 s{S_IT}, {POLL_MAX}\ns_cbranch_scc1 {d}")
        A(f"s_cmp_eq_u64 vcc, 0\ns_cbranch_scc1 {d}")
        if sleep: A(f"s_sleep {sleep}")
        A(f"s_branch {loop}")
        A.label(d)
    def prog_poll(groups, vaddr, ssoff, macc, sleep):
        for (m, lds_, sm) in groups: A(f"s_mov_b64 s[{m}:{m+1}], -1")
        lp = A.newlabel("PP"); dn = A.newlabel("PPD")
        A.label(lp)
        for (m, lds_, sm) in groups:
            sk = A.newlabel("PS")
            A(f"s_mov_b64 exec, s[{m}:{m+1}]\ns_cbranch_execz {sk}")
            for (r, imm) in lds_: A(f"buffer_load_dwordx4 {vr(r)}, v{vaddr}, s[40:43], s{ssoff} offen offset:{imm} sc1")
            A.label(sk)
        A("s_waitcnt vmcnt(0)")
        for (m, lds_, sm) in groups:
            sk = A.newlabel("PS")
            A(f"s_mov_b64 exec, s[{m}:{m+1}]\ns_cbranch_execz {sk}")
            regs = [r + k for (r, imm) in lds_ for k in range(4)]
            msad(regs, macc)
            A(f"v_cmp_eq_u32 vcc, 0, v{macc}")
            A(f"s_andn2_b64 s[{m}:{m+1}], s[{m}:{m+1}], vcc\ns_mov_b64 exec, vcc")
            for n, r in enumerate(regs): A(f"v_add_f32 v{sm+n}, v{sm+n}, v{r}")
            A.label(sk)
        m0 = groups[0][0]
        A(f"s_mov_b64 s[48:49], s[{m0}:{m0+1}]")
        for (m, lds_, sm) in groups[1:]: A(f"s_or_b64 s[48:49], s[48:49], s[{m}:{m+1}]")
        A(f"s_add_u32 s{S_IT}, s{S_IT}, 1\ns_cmp_ge_u32 s{S_IT}, {POLL_MAX}\ns_cbranch_scc1 {dn}")
        A(f"s_cmp_eq_u64 s[48:49], 0\ns_cbranch_scc1 {dn}")
        if sleep: A(f"s_sleep {sleep}")
        A(f"s_branch {lp}")
        A.label(dn)
        A("s_mov_b64 exec, -1")
    def early_store():
        if est == 1: return
        if est == 2:
            A("v_lshlrev_b32 v36, 4, v1\nv_sub_u32 v3, v3, v36")
            A(f"buffer_store_dwordx4 {vr(20)}, v3, s[40:43], s46 offen sc1")
            A(f"buffer_store_dwordx4 {vr(24)}, v3, s[40:43], s46 offen offset:128 sc1")
            return
        if est == 4:
            A("s_mov_b64 exec, 1")
            A(f"buffer_store_dwordx4 {vr(20)}, v3, s[40:43], s46 offen sc1")
            A("s_mov_b64 exec, -1")
            return
        if est == 5:
            A("s_mov_b64 exec, 0xff")
            A("v_lshlrev_b32 v36, 4, v1\nv_sub_u32 v3, v3, v36")
            A(f"buffer_store_dwordx4 {vr(20)}, v3, s[40:43], s46 offen sc1")
            A("s_mov_b64 exec, -1")
            return
        if est == 6:
            A("v_lshlrev_b32 v36, 4, v1\nv_sub_u32 v3, v3, v36")
            A(f"buffer_store_dwordx4 {vr(20)}, v3, s[40:43], s46 offen sc1")
            return
        if est == 7:
            A("v_lshlrev_b32 v36, 4, v1\nv_sub_u32 v3, v3, v36")
            A(f"buffer_store_dwordx4 {vr(20)}, v3, s[40:43], s46 offen")
            A(f"buffer_store_dwordx4 {vr(24)}, v3, s[40:43], s46 offen offset:128")
            return
        if est == 8:
            A("v_lshlrev_b32 v36, 4, v1\nv_sub_u32 v3, v3, v36")
            A(f"buffer_store_dwordx4 {vr(20)}, v3, s[40:43], s46 offen sc0 sc1")
            A(f"buffer_store_dwordx4 {vr(24)}, v3, s[40:43], s46 offen offset:128 sc0 sc1")
            return
        if est == 9:
            A("v_lshlrev_b32 v36, 4, v1\nv_sub_u32 v3, v3, v36")
            A(f"buffer_store_dwordx4 {vr(20)}, v3, s[40:43], s46 offen sc1 nt")
            A(f"buffer_store_dwordx4 {vr(24)}, v3, s[40:43], s46 offen offset:128 sc1 nt")
            return
        pol = " sc1" if est == 0 else ""
        A(f"buffer_store_dwordx4 {vr(20)}, v3, s[40:43], s46 offen{pol}")
        A(f"buffer_store_dwordx4 {vr(24)}, v3, s[40:43], s46 offen offset:16{pol}")
    def load_tag():
        A(f"s_load_dword s{S_TAG}, s[26:27], {WOFF}")
    def make_tag():
        A(f"s_and_b32 s{S_TAG}, s{S_TAG}, 0xff\ns_cmp_eq_u32 s{S_TAG}, 0xff\ns_cselect_b32 s{S_TAG}, 0, s{S_TAG}\ns_add_u32 s{S_TAG}, s{S_TAG}, 1")
    def allreduce2(a0, a1, t0, t1, op):
        A(f"v_mov_b32 v{t0}, v{a0}\nv_mov_b32 v{t1}, v{a1}\ns_nop 1")
        A(f"v_permlane32_swap_b32 v{t0}, v{t1}\ns_nop 1")
        A(f"{op} v{t0}, v{t0}, v{t1}\ns_nop 0\nv_mov_b32 v{t1}, v{t0}\ns_nop 1")
        A(f"v_permlane16_swap_b32 v{t0}, v{t1}\ns_nop 1")
        A(f"{op} v{t0}, v{t0}, v{t1}\ns_nop 1")
        for r in (1, 2, 4, 8):
            A(f"{op}_dpp v{t0}, v{t0}, v{t0} row_ror:{r} row_mask:0xf bank_mask:0xf\ns_nop 1")

    hdr = []
    hdr.append(f"; @launch grid=(256,1,1) block=(512,1,1) lds={LDS_BYTES}")
    hdr.append('.amdgcn_target "amdgcn-amd-amdhsa--gfx950"')
    hdr.append(".text"); hdr.append(f".globl {NAME}_kernel"); hdr.append(".p2align 8"); hdr.append(f".type {NAME}_kernel,@function")
    hdr.append(f"{NAME}_kernel:")

    A("s_cmp_ge_u32 s2, 256\ns_cbranch_scc1 L_END")
    stamp(0)
    A("s_load_dwordx16 s[4:19], s[0:1], 0")
    A("s_load_dwordx8 s[20:27], s[0:1], 64")
    A("v_lshrrev_b32 v1, 6, v0\nv_and_b32 v0, 63, v0")
    A("s_and_b32 s28, s2, 7")
    A("v_readfirstlane_b32 s3, v1")
    A("s_bfe_u32 s29, s2, 0x30003")
    A("s_lshr_b32 s30, s2, 6")
    if mapm == 1:
        A("s_mov_b32 s46, s28\ns_mov_b32 s28, s29\ns_mov_b32 s29, s46")
    if mapm == 2:
        A("s_add_u32 s28, s28, 2\ns_and_b32 s28, s28, 7")
    if mapm == 3:
        A("s_xor_b32 s29, s29, 4")
    A("s_lshl_b32 s31, s30, 3\ns_add_u32 s31, s31, s28")
    A(f"s_mov_b32 s{S_SELLO}, 0x05040100\ns_mov_b32 s{S_SELHI}, 0x07060302\ns_mov_b32 s{S_IT}, 0")
    A("s_mov_b32 s56, 0xff00ff00\ns_mov_b32 s57, 0xff00ff00")
    A("s_cmp_ge_u32 s3, 4\ns_cbranch_scc1 L_X")

    LB = [64, 96, 128, 160]; SP = 192
    TB = [SP, LB[0], LB[1], LB[2]]
    ACC = 12; AV = 20
    A("s_lshl_b32 s44, s29, 3\ns_add_u32 s44, s44, s28\ns_lshl_b32 s44, s44, 21\ns_add_u32 s44, s44, 0x180000")
    A("s_lshl_b32 s45, s30, 17\ns_add_u32 s44, s44, s45")
    A("s_lshl_b32 s58, s3, 15")
    A("s_add_u32 s59, s44, s58")
    A(f"s_add_u32 s58, s58, {L_K}")
    if rotm == 0:
        A("s_lshr_b32 s45, s2, 3\ns_add_u32 s45, s45, s2\ns_lshl_b32 s46, s3, 3\ns_add_u32 s45, s45, s46")
    elif rotm == 1:
        A("s_lshr_b32 s45, s2, 3\ns_lshl_b32 s46, s3, 3\ns_add_u32 s45, s45, s46")
    elif rotm == 2:
        A("s_lshl_b32 s45, s2, 2\ns_bfe_u32 s46, s2, 0x20003\ns_add_u32 s45, s45, s46\ns_lshl_b32 s46, s3, 3\ns_add_u32 s45, s45, s46")
    elif rotm == 3:
        A("s_lshl_b32 s45, s2, 2\ns_add_u32 s45, s45, s3\ns_mul_i32 s45, s45, 0x9e3779b1\ns_lshr_b32 s45, s45, 27")
    A("v_lshrrev_b32 v1, 5, v0\nv_and_b32 v2, 31, v0\nv_xor_b32 v2, v2, v1\nv_lshlrev_b32 v2, 4, v2\nv_lshl_add_u32 v2, v1, 9, v2")
    A("v_lshrrev_b32 v1, 3, v0\nv_lshlrev_b32 v4, 12, v1\nv_and_b32 v1, 7, v0\nv_lshl_add_u32 v4, v1, 4, v4")
    A("s_lshl_b32 s46, s3, 7\nv_add_u32 v4, s46, v4")
    A("v_mov_b32 v10, 0")
    A("s_lshl_b32 s46, s3, 2\nv_mov_b32 v11, s46")
    A("s_waitcnt lgkmcnt(0)")
    A.srd(32, 6, 0x8000000)
    nissued = 0
    def throttle():
        if nissued >= D: A(f"s_waitcnt vmcnt({D-1})")
    for u in range(32):
        A(f"s_add_u32 s46, s45, {u}\ns_and_b32 s46, s46, 31\ns_lshl_b32 s47, s46, 10\ns_add_u32 s48, s47, s59\ns_add_u32 m0, s47, s58")
        A("s_lshl_b32 s49, s46, 5\ns_and_b32 s49, s49, 0xe0\nv_xor_b32 v3, s49, v2")
        A(f"buffer_load_dwordx4 v3, s[32:35], s48 offen{kvpol} lds")
        nissued += 1
        if u == min(D, 4) - 1:
            A.srd(36, 8, 0x8000000); A.srd(40, 26, 0x20000000)
            load_tag()
            A("s_barrier")
        throttle()
        if nissued - (D - 1) == 16:
            A(f"v_mov_b32 v9, 1\nds_write_b32 v11, v9 offset:{L_F}")
    done_pairs = 0
    def v_progress(complete):
        nonlocal done_pairs
        while (done_pairs + 1) * 2 <= complete:
            kb, a = divmod(done_pairs, 4)
            perms_pair(LB[kb], TB[kb], a)
            done_pairs += 1
    for n in range(32):
        kb, e = divmod(n, 8)
        if e == 0: A(f"s_add_u32 s48, s44, {kb*32768}")
        A(f"buffer_load_dwordx4 {vr(LB[kb] + 4*e)}, v4, s[36:39], s48 offen offset:{e*512}{kvpol}")
        nissued += 1
        throttle()
        comp = nissued - (D - 1)
        if comp == 32:
            A(f"v_mov_b32 v9, 2\nds_write_b32 v11, v9 offset:{L_F}")
            stamp(1)
        v_progress(comp - 32)
        if n == VT - 1:
            assert comp > 32
            A(f"v_mov_b32 v9, 3\nds_write_b32 v11, v9 offset:{L_F}")
    stamp(2)
    A("s_setprio 3")
    A("s_waitcnt lgkmcnt(0)")
    make_tag()
    A("v_and_b32 v1, 15, v0\nv_lshrrev_b32 v2, 4, v0")
    A("v_bfe_u32 v3, v1, 1, 1\nv_lshlrev_b32 v3, 9, v3")
    A("v_lshl_add_u32 v3, v2, 5, v3\nv_and_b32 v9, 1, v1\nv_lshl_add_u32 v3, v9, 4, v3")
    A(f"v_add_u32 v3, {L_PB}, v3\nv_mov_b32 v9, {L_ZERO}\nv_lshrrev_b32 v1, 2, v1")
    for q in range(4):
        A(f"v_cmp_eq_u32 vcc, {q}, v1\ns_nop 1\nv_cndmask_b32 v{5+q}, v9, v3, vcc")
    A("v_bfe_u32 v1, v0, 3, 1\nv_lshlrev_b32 v1, 15, v1")
    A("v_and_b32 v3, 7, v0\nv_lshl_add_u32 v1, v3, 5, v1\nv_lshl_add_u32 v1, v2, 3, v1")
    A("s_lshl_b32 s46, s28, 2\ns_lshr_b32 s47, s3, 1\ns_add_u32 s46, s46, s47\ns_lshl_b32 s46, s46, 14")
    A("s_lshl_b32 s47, s29, 11\ns_add_u32 s46, s46, s47\ns_lshl_b32 s47, s30, 9\ns_add_u32 s46, s46, s47")
    A(f"s_and_b32 s47, s3, 1\ns_lshl_b32 s47, s47, 8\ns_add_u32 s46, s46, s47\ns_add_u32 s60, s46, {OP}")
    A("v_mov_b32 v36, 0xffffff00")
    A(f"v_bfe_u32 v37, v0, 3, 1\nv_lshlrev_b32 v37, 2, v37")
    if not so: lds_wait4(L_XQ, 3, 40, 10)
    def pv(kb, first):
        for q in range(4): A(f"ds_read_b128 {vr(AV+4*q)}, v{5+q} offset:{kb*128}")
        for c in range(8):
            if c < 4: A(f"s_waitcnt lgkmcnt({3-c})")
            a = ACC + 4*(c >> 2)
            cin = "0" if (first and (c & 3) == 0) else vr(a)
            A(f"v_mfma_f32_16x16x32_bf16 {vr(a)}, {vr(AV+4*(c&3))}, {vr(TB[kb]+4*c)}, {cin}")
    assert D <= 9
    for kb in range(3):
        assert done_pairs >= 4*(kb+1)
        pv(kb, kb == 0)
    if not so: lds_wait1(10, L_SC, 1, 40)
    A(f"ds_read_b32 v38, v37 offset:{L_SC+8}")
    for w in range(D - 2, -1, -1):
        A(f"s_waitcnt vmcnt({w})")
        v_progress(32 - w)
    stamp(3)
    A(f"v_mov_b32 v9, 4\nds_write_b32 v11, v9 offset:{L_F}")
    pv(3, False)
    A("s_nop 7")
    for a in range(2):
        b_ = ACC + 4*a
        A(f"v_cndmask_b32 v{42+a}, v{b_+2}, v{b_+1}, s[56:57]")
        A(f"v_cndmask_b32 v{40+a}, v{b_+0}, v{b_+3}, s[56:57]")
    A("s_nop 0")
    for a in range(2):
        A(f"v_add_f32_dpp v{40+a}, v{42+a}, v{40+a} row_ror:8 row_mask:0xf bank_mask:0xf")
    A("v_mul_f32 v40, v40, v38\nv_mul_f32 v41, v41, v38")
    tag([40, 41], 36)
    A("buffer_store_dwordx2 v[40:41], v1, s[40:43], s60 offen sc1")
    stamp(4)
    if diag:
        stamp_store(0, [0, 1, 2, 3, 4], wavemul=5)
    A("s_endpgm")

    A.label("L_X")
    if so and abl == 0: A("s_barrier\ns_endpgm")
    A("s_setprio 3")
    A("s_sub_u32 s61, s3, 4")
    A("v_and_b32 v1, 7, v0\nv_lshrrev_b32 v2, 3, v0")
    A("v_and_b32 v5, 15, v0\nv_lshrrev_b32 v6, 4, v0")
    A("v_and_b32 v7, 1, v5\nv_lshl_add_u32 v7, v6, 1, v7")
    A("v_lshrrev_b32 v16, 1, v5")
    A("v_mov_b32 v17, 0\nv_mov_b32 v18, 0xffffff00")
    A(f"v_mov_b32 v19, {OOB}")
    A("v_mul_u32_u24 v4, 896, v16\nv_lshl_add_u32 v4, v7, 4, v4")
    A("v_cmp_eq_u32 vcc, 7, v7\ns_nop 1\nv_cndmask_b32 v4, v4, v19, vcc")
    A("v_cmp_eq_u32 s[62:63], 7, v2")
    A("s_waitcnt lgkmcnt(0)")
    A.srd(40, 26, 0x20000000); A.srd(32, 4, 7168)
    load_tag()
    XL = [64, 96, 128]; XT = [160, 192]; XACC = 224; XA = [8, 12]; XRES = 20; XTMP = 28
    A("s_cmp_eq_u32 s3, 5\ns_cbranch_scc1 L_X5\ns_cmp_eq_u32 s3, 6\ns_cbranch_scc1 L_X6\ns_cmp_eq_u32 s3, 7\ns_cbranch_scc1 L_X7")
    A.srd(36, 10, 448*4096*2)
    A("v_lshlrev_b32 v3, 16, v2\nv_lshl_add_u32 v3, v1, 4, v3\nv_cndmask_b32 v3, v3, v19, s[62:63]")
    A(f"s_mul_i32 s46, s30, {112*8192}\ns_lshl_b32 s47, s28, 3\ns_add_u32 s47, s47, s29\ns_lshl_b32 s47, s47, 7\ns_add_u32 s46, s46, s47")
    A("s_mul_i32 s47, s30, 224")
    for blk in range(2):
        for e in range(8):
            A(f"s_add_u32 s48, s46, {(56*blk+e)*8192}")
            A(f"buffer_load_dwordx4 {vr(XL[blk]+4*e)}, v3, s[36:39], s48 offen{wpol}")
        A(f"buffer_load_dwordx4 {vr(XA[blk])}, v4, s[32:35], s47 offen offset:{112*blk}")
    A("s_barrier")
    A("v_lshlrev_b32 v3, 16, v2\nv_lshl_add_u32 v3, v1, 5, v3")
    A("s_lshl_b32 s46, s28, 1\ns_lshr_b32 s47, s29, 2\ns_add_u32 s46, s46, s47\ns_lshl_b32 s46, s46, 12")
    A(f"s_lshl_b32 s47, s30, 10\ns_add_u32 s46, s46, s47\ns_and_b32 s47, s29, 3\ns_lshl_b32 s47, s47, 8\ns_add_u32 s46, s46, s47\ns_add_u32 s46, s46, {QP}")
    A("s_waitcnt vmcnt(9)")
    perms(XL[0], XT[0]); A("s_nop 1"); mfma8(XACC, XA[0], XT[0], True)
    A("s_waitcnt vmcnt(0)")
    perms(XL[1], XT[1]); A("s_nop 1"); mfma8(XACC, XA[1], XT[1], False)
    A("s_waitcnt lgkmcnt(0)"); make_tag(); A("s_nop 3")
    extract8(XACC, XRES, XTMP, 56)
    tag(range(XRES, XRES+8), 18)
    early_store()
    stamp(1)
    A("s_branch L_XMID")
    A.label("L_X5")
    A.srd(36, 16, 448*1792*2)
    A(f"v_mul_u32_u24 v3, {8*3584}, v2\nv_lshl_add_u32 v3, v1, 4, v3\nv_cndmask_b32 v3, v3, v19, s[62:63]")
    A(f"s_mul_i32 s46, s29, {56*3584}\ns_lshl_b32 s47, s31, 7\ns_add_u32 s46, s46, s47")
    A("s_mul_i32 s47, s29, 112")
    A("s_cmp_ge_u32 s31, 28\ns_cbranch_scc1 L_X5S")
    for e in range(8):
        A(f"s_add_u32 s48, s46, {e*3584}")
        A(f"buffer_load_dwordx4 {vr(XL[0]+4*e)}, v3, s[36:39], s48 offen{wpol}")
    A(f"buffer_load_dwordx4 {vr(XA[0])}, v4, s[32:35], s47 offen")
    A("s_barrier")
    A("v_lshlrev_b32 v3, 11, v2\nv_lshl_add_u32 v3, v1, 5, v3")
    A(f"s_lshl_b32 s46, s31, 14\ns_lshl_b32 s47, s29, 8\ns_add_u32 s46, s46, s47\ns_add_u32 s46, s46, {HP}")
    A("s_waitcnt vmcnt(0)")
    perms(XL[0], XT[0]); A("s_nop 1"); mfma8(XACC, XA[0], XT[0], True)
    A("s_waitcnt lgkmcnt(0)"); make_tag(); A("s_nop 3")
    extract8(XACC, XRES, XTMP, 56)
    tag(range(XRES, XRES+8), 18)
    early_store()
    A("s_branch L_XMID")
    A.label("L_X5S")
    A("s_barrier\ns_waitcnt lgkmcnt(0)"); make_tag()
    A("s_branch L_XMID")
    A.label("L_X6")
    A.srd(36, 20, 896)
    A("v_lshlrev_b32 v3, 4, v0\nv_cmp_gt_u32 vcc, 56, v0\ns_nop 1\nv_cndmask_b32 v3, v19, v3, vcc")
    A("s_mul_i32 s47, s29, 896")
    A("buffer_load_dwordx4 v[8:11], v3, s[32:35], s47 offen")
    A("buffer_load_dwordx4 v[12:15], v3, s[36:39], 0 offen")
    A("s_barrier")
    A("s_waitcnt vmcnt(0)")
    A("v_mov_b32 v20, 0")
    for k in range(4):
        A(f"v_lshlrev_b32 v21, 16, v{8+k}\nv_and_b32 v22, 0xffff0000, v{8+k}\nv_lshlrev_b32 v23, 16, v{12+k}\nv_and_b32 v24, 0xffff0000, v{12+k}")
        A("v_mul_f32 v21, v21, v23\nv_mul_f32 v22, v22, v24\nv_cvt_pk_bf16_f32 v21, v21, v22")
        A("v_lshlrev_b32 v22, 16, v21\nv_and_b32 v21, 0xffff0000, v21\nv_add_f32 v20, v20, v22\nv_add_f32 v20, v20, v21")
    allreduce2(20, 20, 21, 22, "v_add_f32")
    A("v_cvt_pk_bf16_f32 v21, v21, v21\nv_lshlrev_b32 v21, 16, v21")
    A("v_mul_f32 v21, 0xbfb8aa3b, v21\nv_exp_f32 v21, v21\ns_nop 0\nv_add_f32 v21, 1.0, v21\nv_rcp_f32 v21, v21\ns_nop 0")
    A("v_cvt_pk_bf16_f32 v21, v21, v21\nv_lshlrev_b32 v22, 16, v21")
    A("v_sub_f32 v23, 1.0, v22\nv_cvt_pk_bf16_f32 v23, v23, v23\nv_lshlrev_b32 v23, 16, v23")
    A(f"ds_write_b64 v17, v[22:23] offset:{L_G}")
    A("s_waitcnt lgkmcnt(0)"); make_tag()
    A("s_branch L_XMID")
    A.label("L_X7")
    A("v_lshlrev_b32 v3, 4, v0\nv_mov_b32 v8, 0\nv_mov_b32 v9, 0\nv_mov_b32 v10, 0\nv_mov_b32 v11, 0")
    A(f"ds_write_b128 v3, v[8:11] offset:{L_ZERO}")
    A("s_waitcnt lgkmcnt(0)\ns_barrier")
    make_tag()

    A.label("L_XMID")
    if abl == 1: A("s_endpgm")
    A("s_lshl_b32 s46, s61, 2\nv_mov_b32 v36, s46")
    A("s_lshl_b32 s46, s29, 4\ns_lshl_b32 s47, s28, 1\ns_add_u32 s46, s46, s47\ns_lshr_b32 s47, s61, 1\ns_add_u32 s46, s46, s47\ns_lshl_b32 s46, s46, 12")
    A(f"s_and_b32 s47, s61, 1\ns_lshl_b32 s47, s47, 9\ns_add_u32 s46, s46, s47\ns_add_u32 s60, s46, {QP}")
    A("v_lshlrev_b32 v3, 3, v0")
    A(f"s_lshl_b32 s46, s61, 8\ns_add_u32 s46, s46, {L_QB}\nv_lshlrev_b32 v37, 2, v0\nv_add_u32 v37, s46, v37")
    if qgate: lds_wait1(36, L_F, qgate, 40)
    stamp(2)
    lp = A.newlabel("QPOLL"); A.label(lp)
    for r in range(4): A(f"buffer_load_dwordx2 v[{40+2*r}:{41+2*r}], v3, s[40:43], s60 offen offset:{r*1024} sc1")
    A("s_waitcnt vmcnt(0)")
    msad(range(40, 48), 38)
    poll_tail(38, lp, sleep_q)
    A("v_add_f32 v40, v40, v42\nv_add_f32 v41, v41, v43\nv_add_f32 v44, v44, v46\nv_add_f32 v45, v45, v47\nv_add_f32 v40, v40, v44\nv_add_f32 v41, v41, v45")
    A("v_cvt_pk_bf16_f32 v40, v40, v41\nds_write_b32 v37, v40")
    A(f"v_mov_b32 v38, 1\ns_waitcnt lgkmcnt(0)\nds_write_b32 v36, v38 offset:{L_XQ}")
    stamp(3)
    if abl == 2: A("s_endpgm")
    A("v_xor_b32 v39, v6, v5\nv_lshlrev_b32 v39, 4, v39\nv_lshl_add_u32 v39, v5, 9, v39\ns_lshl_b32 s46, s61, 15\ns_add_u32 s46, s46, 8192\nv_add_u32 v48, s46, v39")
    A("v_xor_b32 v49, 64, v48\nv_xor_b32 v50, 0x80, v48\nv_xor_b32 v51, 0xc0, v48")
    A(f"v_and_b32 v39, 1, v5\nv_lshlrev_b32 v39, 9, v39\nv_lshl_add_u32 v39, v6, 4, v39")
    lds_wait4(L_XQ, 1, 40, 17)
    QA = 64; KB_ = 96; SACC = 224
    for t in range(8): A(f"ds_read_b128 {vr(QA+4*t)}, v39 offset:{L_QB + 64*t}")
    lds_wait1(36, L_F, 2, 40)
    stamp(4)
    order = [(tau, t) for t in range(8) for tau in range(4)]
    def kread(n):
        tau, t = order[n]
        A(f"ds_read_b128 {vr(KB_+4*n)}, v{48+(t&3)} offset:{(t>>2)*256 + tau*8192}")
    INF = 8
    for n in range(INF): kread(n)
    for n in range(32):
        tau, t = order[n]
        rem = min(INF - 1, 31 - n)
        A(f"s_waitcnt lgkmcnt({rem})")
        cin = "0" if t == 0 else vr(SACC+4*tau)
        A(f"v_mfma_f32_16x16x32_bf16 {vr(SACC+4*tau)}, {vr(QA+4*t)}, {vr(KB_+4*n)}, {cin}")
        if n + INF < 32: kread(n + INF)
    A("v_cmp_eq_u32 s[64:65], 1, v6\nv_cmp_eq_u32 s[66:67], 2, v6\nv_cmp_eq_u32 s[68:69], 3, v6\ns_nop 5")
    for h in range(2):
        A(f"v_cndmask_b32 v{40+h}, v{SACC+h}, v{SACC+4+h}, s[64:65]")
        A(f"v_cndmask_b32 v{40+h}, v{40+h}, v{SACC+8+h}, s[66:67]")
        A(f"v_cndmask_b32 v{40+h}, v{40+h}, v{SACC+12+h}, s[68:69]")
    allreduce2(40, 41, 42, 43, "v_max_f32")
    A(f"v_lshrrev_b32 v44, 5, v0\nv_lshlrev_b32 v44, 2, v44\ns_lshl_b32 s46, s61, 3\nv_add_u32 v44, s46, v44")
    A(f"ds_write_b32 v44, v42 offset:{L_M}")
    A(f"v_mov_b32 v38, 2\ns_waitcnt lgkmcnt(0)\nds_write_b32 v36, v38 offset:{L_XQ}")
    lds_wait4(L_XQ, 2, 52, 17)
    A(f"ds_read_b128 v[52:55], v17 offset:{L_M}\nds_read_b128 v[56:59], v17 offset:{L_M+16}\ns_waitcnt lgkmcnt(0)")
    A("v_max_f32 v52, v52, v54\nv_max3_f32 v52, v52, v56, v58\nv_max_f32 v53, v53, v55\nv_max3_f32 v53, v53, v57, v59")
    A("s_mov_b32 s47, 0x3db8aa3b")
    A("v_sub_f32 v40, v40, v52\nv_sub_f32 v41, v41, v53\nv_mul_f32 v40, s47, v40\nv_mul_f32 v41, s47, v41\nv_exp_f32 v40, v40\nv_exp_f32 v41, v41\ns_nop 0")
    A(f"v_cvt_pk_bf16_f32 v45, v40, v41\ns_lshl_b32 s46, s61, 7\ns_add_u32 s46, s46, {L_PB}\nv_lshlrev_b32 v46, 1, v0\nv_add_u32 v46, s46, v46")
    A("ds_write_b16 v46, v45\nds_write_b16_d16_hi v46, v45 offset:512")
    allreduce2(40, 41, 42, 43, "v_add_f32")
    A(f"ds_write_b32 v44, v42 offset:{L_L}")
    A(f"v_mov_b32 v38, 3\ns_waitcnt lgkmcnt(0)\nds_write_b32 v36, v38 offset:{L_XQ}")
    stamp(5)
    if abl == 3: A("s_endpgm")
    if abl == 4: A("s_cmp_eq_u32 s3, 4\ns_cbranch_scc1 L_END\ns_cmp_eq_u32 s3, 7\ns_cbranch_scc1 L_END")
    A("s_cmp_eq_u32 s3, 5\ns_cbranch_scc1 L_Y5\ns_cmp_eq_u32 s3, 6\ns_cbranch_scc1 L_Y6\ns_cmp_eq_u32 s3, 7\ns_cbranch_scc1 L_Y7")

    A("s_cmp_eq_u32 s29, 7\ns_cbranch_scc1 L_Y4END")
    A.srd(36, 12, 4096*448*2)
    A("v_mul_u32_u24 v3, 7168, v2\nv_lshl_add_u32 v3, v1, 4, v3")
    A("s_lshl_b32 s58, s28, 2\ns_add_u32 s58, s58, s30")
    A(f"s_mul_i32 s46, s58, {128*896}\ns_lshl_b32 s47, s29, 7\ns_add_u32 s59, s46, s47")
    A("v_lshlrev_b32 v4, 11, v16\nv_lshl_add_u32 v4, v7, 5, v4")
    A(f"s_lshl_b32 s60, s58, 14\ns_add_u32 s60, s60, {OP}")
    A(f"v_mul_u32_u24 v36, {28*2048}, v2\nv_lshrrev_b32 v37, 1, v1\nv_lshl_add_u32 v36, v37, 11, v36\nv_and_b32 v37, 1, v1\nv_lshl_add_u32 v36, v37, 5, v36")
    A(f"s_lshl_b32 s46, s29, 13\ns_lshl_b32 s47, s58, 6\ns_add_u32 s46, s46, s47\ns_add_u32 s62, s46, {FP}")
    A(f"s_mul_i32 s46, s28, 28\ns_lshl_b32 s47, s29, 2\ns_add_u32 s46, s46, s47\ns_add_u32 s46, s46, s30\ns_lshl_b32 s63, s46, 11\ns_add_u32 s63, s63, {FP}")
    A("v_lshlrev_b32 v37, 4, v0")
    A("v_lshlrev_b32 v38, 5, v0")
    lds_wait4(L_F, 3, 40, 17)
    WL = [64, 96]; WT = [128, 64]; G0 = 160
    for blk in range(2):
        A(f"s_add_u32 s46, s59, {blk*64*896}\ns_add_u32 s47, s46, 3584")
        for e in range(8):
            A(f"buffer_load_dwordx4 {vr(WL[blk]+4*e)}, v3, s[36:39], s{46 + (e&1)} offen offset:{(e>>1)*896}{wpol}")
    A("s_waitcnt vmcnt(8)")
    perms(WL[0], WT[0])
    A("s_waitcnt vmcnt(0)")
    perms(WL[1], WT[1])
    stamp(6)
    SUM = 96
    for k in range(16): A(f"v_mov_b32 v{SUM+k}, 0")
    groups = []
    for blk in range(2):
        for s_ in range(4):
            k = blk*4 + s_
            groups.append((64 + 2*k, [(G0 + k*8 + hh*4, s_*512 + blk*256 + hh*16) for hh in range(2)], SUM + 8*blk))
    lds_wait4(L_F, 4, 40, 17)
    prog_poll(groups, 4, 60, 39, sleep_o)
    stamp(7)
    for blk in range(2):
        g = SUM + blk*8
        for k in range(4): A(f"v_cvt_pk_bf16_f32 v{XA[blk]+k}, v{g+2*k}, v{g+2*k+1}")
    A("s_nop 1")
    for blk in range(2):
        mfma8(XACC, XA[blk], WT[blk], blk == 0)
    lds_wait1(17, L_W2F, 1, 40)
    A(f"ds_read_b128 v[40:43], v38 offset:{L_W2R}\nds_read_b128 v[44:47], v38 offset:{L_W2R+16}")
    A("s_nop 4")
    extract8(XACC, XRES, XTMP, 56)
    A("s_waitcnt lgkmcnt(0)")
    for k in range(8): A(f"v_add_f32 v{XRES+k}, v{XRES+k}, v{40+k}")
    tag(range(XRES, XRES+8), 18)
    A(f"buffer_store_dwordx4 {vr(XRES)}, v36, s[40:43], s62 offen sc1")
    A(f"buffer_store_dwordx4 {vr(XRES+4)}, v36, s[40:43], s62 offen offset:16 sc1")
    stamp(8)
    A.srd(36, 22, 7168)
    A("v_and_b32 v3, 3, v0\nv_lshlrev_b32 v3, 2, v3\nv_and_b32 v4, 1, v6\nv_lshl_add_u32 v3, v4, 1, v3\nv_lshrrev_b32 v4, 1, v6\nv_add_u32 v3, v3, v4\nv_lshlrev_b32 v3, 1, v3")
    A("v_cmp_gt_u32 vcc, 4, v5\ns_nop 1\nv_cndmask_b32 v3, v19, v3, vcc")
    A("s_mul_i32 s46, s28, 896\ns_lshl_b32 s47, s29, 7\ns_add_u32 s46, s46, s47\ns_lshl_b32 s47, s30, 5\ns_add_u32 s59, s46, s47")
    for k in range(4): A(f"v_mov_b32 v{40+k}, 0")
    prog_poll([(64, [(44, 0)], 40), (66, [(48, 1024)], 40)], 37, 63, 39, sleep_f)
    A("s_nop 1\nv_permlane32_swap_b32 v40, v41\nv_permlane32_swap_b32 v42, v43\ns_nop 1")
    A("v_add_f32 v40, v40, v41\nv_add_f32 v42, v42, v43\ns_nop 1\nv_permlane16_swap_b32 v40, v42\ns_nop 1\nv_add_f32 v40, v40, v42\ns_nop 1")
    A("v_add_f32_dpp v40, v40, v40 row_ror:4 row_mask:0xf bank_mask:0xf\ns_nop 1")
    A("v_add_f32_dpp v40, v40, v40 row_ror:8 row_mask:0xf bank_mask:0xf")
    A("v_cvt_pk_bf16_f32 v40, v40, v40")
    A("buffer_store_short v40, v3, s[36:39], s59 offen")
    A("s_cmp_lg_u32 s2, 0\ns_cbranch_scc1 L_Y4END")
    A(f"v_mov_b32 v40, s{S_TAG}\nv_cmp_eq_u32 vcc, 0, v0\ns_nop 1\nv_cndmask_b32 v3, v19, v17, vcc")
    A(f"buffer_store_dword v40, v3, s[40:43], 0 offen offset:{WOFF}")
    A.label("L_Y4END")
    if diag:
        stamp(9)
        stamp_store(24, [1, 2, 3, 4, 5, 6, 7, 8, 9])
    A("s_endpgm")

    A.label("L_Y5")
    A("s_cmp_ge_u32 s31, 28\ns_cbranch_scc1 L_END")
    A(f"s_lshl_b32 s46, s31, 14\ns_lshl_b32 s47, s29, 11\ns_add_u32 s46, s46, s47\ns_add_u32 s60, s46, {HP}")
    A(f"s_lshl_b32 s46, s31, 11\ns_lshl_b32 s47, s29, 8\ns_add_u32 s46, s46, s47\ns_add_u32 s59, s46, {HF}")
    A("v_lshlrev_b32 v3, 2, v0")
    A(f"ds_read_b64 v[52:53], v17 offset:{L_G}")
    lp = A.newlabel("HPOLL"); A.label(lp)
    for r in range(8): A(f"buffer_load_dword v{40+r}, v3, s[40:43], s60 offen offset:{r*256} sc1")
    A("s_waitcnt vmcnt(0) lgkmcnt(0)")
    msad(range(40, 48), 39)
    poll_tail(39, lp, 8)
    A("v_add_f32 v40, v40, v41\nv_add_f32 v42, v42, v43\nv_add_f32 v44, v44, v45\nv_add_f32 v46, v46, v47\nv_add_f32 v40, v40, v42\nv_add_f32 v44, v44, v46\nv_add_f32 v40, v40, v44")
    A("v_cvt_pk_bf16_f32 v40, v40, v40\nv_lshlrev_b32 v40, 16, v40")
    A("v_mul_f32 v41, 0xbfb8aa3b, v40\nv_exp_f32 v41, v41\ns_nop 0\nv_add_f32 v41, 1.0, v41\nv_rcp_f32 v41, v41\ns_nop 0\nv_mul_f32 v40, v40, v41")
    A("v_cvt_pk_bf16_f32 v40, v40, v40\nv_lshlrev_b32 v40, 16, v40\nv_mul_f32 v40, v40, v53")
    tag([40], 18)
    A("buffer_store_dword v40, v3, s[40:43], s59 offen sc1")
    A("s_endpgm")

    A.label("L_Y6")
    lds_wait4(L_XQ, 3, 40, 17)
    A(f"ds_read_b128 v[40:43], v17 offset:{L_L}\nds_read_b128 v[44:47], v17 offset:{L_L+16}\nds_read_b64 v[60:61], v17 offset:{L_G}\ns_waitcnt lgkmcnt(0)")
    A("v_add_f32 v40, v40, v42\nv_add_f32 v44, v44, v46\nv_add_f32 v40, v40, v44\nv_add_f32 v41, v41, v43\nv_add_f32 v45, v45, v47\nv_add_f32 v41, v41, v45")
    A("v_and_b32 v42, 1, v0\nv_cmp_eq_u32 vcc, 1, v42\ns_nop 1\nv_cndmask_b32 v44, v52, v53, vcc\nv_cndmask_b32 v46, v40, v41, vcc")
    A("v_lshlrev_b32 v45, 8, v44\nv_mov_b32 v47, v46")
    tag([44, 45, 46, 47], 18)
    A(f"s_lshl_b32 s46, s29, 3\ns_add_u32 s46, s46, s28\ns_lshl_b32 s46, s46, 8\ns_add_u32 s60, s46, {ML}\ns_lshl_b32 s47, s30, 6\ns_add_u32 s59, s60, s47")
    A("v_lshlrev_b32 v3, 4, v0\nv_cmp_gt_u32 vcc, 4, v0\ns_nop 1\nv_cndmask_b32 v4, v19, v3, vcc")
    A("buffer_store_dwordx4 v[44:47], v4, s[40:43], s59 offen sc1")
    A("v_and_b32 v3, 0xff, v3")
    lp = A.newlabel("MPOLL"); A.label(lp)
    A("buffer_load_dwordx4 v[44:47], v3, s[40:43], s60 offen sc1")
    A("s_waitcnt vmcnt(0)")
    msad(range(44, 48), 39)
    poll_tail(39, lp, 8)
    A("v_bfe_u32 v45, v45, 8, 8\nv_and_or_b32 v44, v44, v18, v45")
    A("v_mov_b32 v48, v44\ns_nop 1\nv_max_f32_dpp v48, v48, v48 row_ror:4 row_mask:0xf bank_mask:0xf\ns_nop 1\nv_max_f32_dpp v48, v48, v48 row_ror:8 row_mask:0xf bank_mask:0xf")
    A("s_mov_b32 s47, 0x3db8aa3b")
    A("v_sub_f32 v44, v44, v48\nv_mul_f32 v44, s47, v44\nv_exp_f32 v44, v44\ns_nop 0\nv_mul_f32 v46, v46, v44\ns_nop 1")
    A("v_add_f32_dpp v46, v46, v46 row_ror:4 row_mask:0xf bank_mask:0xf\ns_nop 1\nv_add_f32_dpp v46, v46, v46 row_ror:8 row_mask:0xf bank_mask:0xf")
    A("v_cmp_eq_u32 vcc, 1, v42\ns_nop 1\nv_cndmask_b32 v44, v52, v53, vcc")
    A("v_sub_f32 v44, v44, v48\nv_mul_f32 v44, s47, v44\nv_exp_f32 v44, v44\nv_rcp_f32 v46, v46\ns_nop 0\nv_mul_f32 v44, v44, v46\nv_mul_f32 v44, v44, v60")
    A(f"v_lshlrev_b32 v42, 2, v42\nds_write_b32 v42, v44 offset:{L_SC+8}")
    A(f"v_mov_b32 v38, 1\ns_waitcnt lgkmcnt(0)\nds_write_b32 v17, v38 offset:{L_SC}")
    if diag:
        stamp(6)
        stamp_store(36, [6])
    A("s_endpgm")

    A.label("L_Y7")
    A("s_cmp_eq_u32 s29, 7\ns_cbranch_scc1 L_END")
    A("v_lshlrev_b32 v38, 5, v0")
    A("s_cmp_ge_u32 s31, 28\ns_cbranch_scc1 L_Y7Z")
    A.srd(36, 18, 1792*448*2)
    A("v_mul_u32_u24 v3, 7168, v2\nv_lshl_add_u32 v3, v1, 4, v3")
    A(f"s_mul_i32 s46, s31, {64*896}\ns_lshl_b32 s47, s29, 7\ns_add_u32 s58, s46, s47\ns_add_u32 s59, s58, 3584")
    A("v_lshlrev_b32 v4, 8, v16\nv_lshl_add_u32 v4, v7, 5, v4")
    A(f"s_lshl_b32 s60, s31, 11\ns_add_u32 s60, s60, {HF}")
    lds_wait4(L_F, 3, 40, 17)
    for e in range(8):
        A(f"buffer_load_dwordx4 {vr(64+4*e)}, v3, s[36:39], s{58 + (e>>2)} offen offset:{(e&3)*896}{wpol}")
    lp = A.newlabel("H2POLL"); A.label(lp)
    A("buffer_load_dwordx4 v[40:43], v4, s[40:43], s60 offen sc1\nbuffer_load_dwordx4 v[44:47], v4, s[40:43], s60 offen offset:16 sc1")
    A("s_waitcnt vmcnt(0)")
    msad(range(40, 48), 39)
    poll_tail(39, lp, 4)
    for k in range(4): A(f"v_cvt_pk_bf16_f32 v{8+k}, v{40+2*k}, v{41+2*k}")
    perms(64, 96); A("s_nop 1")
    mfma8(XACC, 8, 96, True)
    A("s_nop 7")
    extract8(XACC, XRES, XTMP, 56)
    A.label("L_Y7W")
    A(f"ds_write_b128 v38, {vr(XRES)} offset:{L_W2R}\nds_write_b128 v38, {vr(XRES+4)} offset:{L_W2R+16}")
    A(f"v_mov_b32 v39, 1\ns_waitcnt lgkmcnt(0)\nds_write_b32 v17, v39 offset:{L_W2F}")
    A("s_endpgm")
    A.label("L_Y7Z")
    for k in range(8): A(f"v_mov_b32 v{XRES+k}, 0")
    A("s_branch L_Y7W")

    A.label("L_END")
    A("s_endpgm")
    tail = ['.section .rodata,"a"', ".p2align 6", f".amdhsa_kernel {NAME}_kernel",
            "  .amdhsa_next_free_vgpr 256", "  .amdhsa_next_free_sgpr 100", "  .amdhsa_accum_offset 256",
            "  .amdhsa_group_segment_fixed_size 0", "  .amdhsa_kernarg_size 96", "  .amdhsa_user_sgpr_count 2",
            "  .amdhsa_user_sgpr_kernarg_segment_ptr 1", "  .amdhsa_system_sgpr_workgroup_id_x 1",
            "  .amdhsa_float_denorm_mode_32 3", ".end_amdhsa_kernel"]
    return "\n".join(hdr + A.L + tail) + "\n"

if __name__ == "__main__":
    import argparse
    ap = argparse.ArgumentParser()
    ap.add_argument("-o", default="k.s")
    ap.add_argument("--D", type=int, default=6)
    ap.add_argument("--diag", action="store_true")
    ap.add_argument("--qgate", type=int, default=1)
    ap.add_argument("--VT", type=int, default=32)
    ap.add_argument("--so", action="store_true")
    ap.add_argument("--kvpol", default=" nt")
    ap.add_argument("--est", type=int, default=0)
    ap.add_argument("--abl", type=int, default=0)
    ap.add_argument("--wpol", default=" nt")
    ap.add_argument("--rotm", type=int, default=0)
    ap.add_argument("--mapm", type=int, default=0)
    a = ap.parse_args()
    open(a.o, "w").write(gen(D=a.D, diag=a.diag, qgate=a.qgate, VT=a.VT, so=a.so, rotm=a.rotm, mapm=a.mapm, abl=a.abl, kvpol=a.kvpol, est=a.est, wpol=a.wpol))
```

```python
import sys
NAME = "gated_mix__sliding_block_cached__dense_activation_silu__decode"

import os
XB = int(os.environ.get("XB", "0"), 0)
WOFF = 0
QP = XB + 0x1000
HP = QP + 0x80000
HF = HP + 0x70000
ML = HF + 0xE000
OP = ML + 0x4000
FP = OP + 0x80000
assert FP + 0x70000 <= XB + 0x200000
STAMP = 0x10000000
L_K = 8192
L_QB = 0
L_PB = L_QB + 1024
L_ZERO = L_PB + 1024
L_MISC = L_ZERO + 512
L_F = L_MISC
L_XQ = L_MISC + 16
L_SC = L_MISC + 32
L_W2F = L_MISC + 48
L_G = L_MISC + 64
L_M = L_MISC + 80
L_L = L_MISC + 112
L_W2R = L_MISC + 512
assert L_W2R + 2048 <= L_K
LDS_BYTES = L_K + 131072

OOB = 0x40000000
POLL_MAX = 200000

class E:
    def __init__(self):
        self.L = []
        self.n = 0
    def __call__(self, s):
        for x in s.split("\n"):
            x = x.strip()
            if x: self.L.append("    " + x)
    def label(self, s): self.L.append(s + ":")
    def newlabel(self, p="L"):
        self.n += 1
        return f"{p}_{self.n}"
    def srd(self, d, b, n):
        self(f"s_mov_b32 s{d}, s{b}\ns_mov_b32 s{d+1}, s{b+1}\ns_mov_b32 s{d+2}, {n}\ns_mov_b32 s{d+3}, 0x20000")

def vr(b, n=4): return f"v[{b}:{b+n-1}]"

def gen(D=6, diag=False, qgate=1, sleep_q=4, sleep_o=0, sleep_f=0, wpol=" nt", VT=32, rotm=0, so=False, mapm=0, abl=0, est=0, kvpol=" nt", dbgst=False):
    A = E()
    S_TAG = 50; S_SELLO = 52; S_SELHI = 53; S_IT = 54
    NST = 8
    def stamp(k):
        if diag: A(f"s_memrealtime s[{80+2*k}:{81+2*k}]")
    def stamp_store(slot0, ks, wavemul=0):
        if not diag: return
        A("s_waitcnt lgkmcnt(0)")
        A("s_mov_b64 exec, 1")
        if dbgst:
            A.srd(36, 24, 256)
            base = {0: 0, 24: 6, 36: 15}[slot0]
            for n, k in enumerate(ks):
                A(f"v_mov_b32 v2, {4*(base+n+(1 if slot0 == 0 else 0))}\nv_mov_b32 v4, s{80+2*k}")
                A("buffer_atomic_umax v4, v2, s[36:39], 0 offen\ns_nop 1")
                if slot0 == 0 and k == 0:
                    A(f"s_not_b32 s46, s80\nv_mov_b32 v2, 0\nv_mov_b32 v4, s46\nbuffer_atomic_umax v4, v2, s[36:39], 0 offen\ns_nop 1")
            A("s_mov_b64 exec, -1")
            return
        for n, k in enumerate(ks):
            A(f"s_lshl_b32 s46, s2, 9\ns_add_u32 s46, s46, {STAMP + 8*(slot0+n)}\ns_mul_i32 s47, s3, {8*wavemul}\ns_add_u32 s46, s46, s47\nv_mov_b32 v2, s46")
            A(f"v_mov_b32 v4, s{80+2*k}\nv_mov_b32 v5, s{81+2*k}")
            A("buffer_store_dwordx2 v[4:5], v2, s[40:43], 0 offen")
            A("s_nop 1")
        A("s_mov_b64 exec, -1")

    def lds_wait4(off, k, va, vz):
        l = A.newlabel("LW"); d = A.newlabel("LWD")
        A.label(l)
        A(f"ds_read_b128 {vr(va)}, v{vz} offset:{off}")
        A("s_waitcnt lgkmcnt(0)")
        A(f"v_min_u32 v{va}, v{va}, v{va+1}\nv_min3_u32 v{va}, v{va}, v{va+2}, v{va+3}\ns_nop 0")
        A(f"v_readfirstlane_b32 s46, v{va}\ns_nop 0")
        A(f"s_cmp_ge_u32 s46, {k}\ns_cbranch_scc1 {d}\ns_sleep 1\ns_branch {l}")
        A.label(d)
    def lds_wait1(vaddr, off, k, va):
        l = A.newlabel("LW"); d = A.newlabel("LWD")
        A.label(l)
        A(f"ds_read_b32 v{va}, v{vaddr} offset:{off}")
        A("s_waitcnt lgkmcnt(0)")
        A(f"v_readfirstlane_b32 s46, v{va}\ns_nop 0")
        A(f"s_cmp_ge_u32 s46, {k}\ns_cbranch_scc1 {d}\ns_sleep 1\ns_branch {l}")
        A.label(d)
    def perms_pair(L, T, a):
        for jj in range(4):
            lo = L + 4*(2*a) + jj; hi = L + 4*(2*a+1) + jj
            A(f"v_perm_b32 v{T + 4*(2*jj) + a}, v{hi}, v{lo}, s{S_SELLO}")
            A(f"v_perm_b32 v{T + 4*(2*jj+1) + a}, v{hi}, v{lo}, s{S_SELHI}")
    def perms(L, T):
        for a in range(4): perms_pair(L, T, a)
    def mfma8(acc, Areg, T, first):
        for c in range(8):
            cin = "0" if first else vr(acc + 4*c)
            A(f"v_mfma_f32_16x16x32_bf16 {vr(acc+4*c)}, {vr(Areg)}, {vr(T+4*c)}, {cin}")
    def extract8(acc, res, tmp, smask):
        for c in range(8):
            A(f"v_cndmask_b32 v{tmp+c}, v{acc+4*c+2}, v{acc+4*c+1}, s[{smask}:{smask+1}]")
            A(f"v_cndmask_b32 v{res+c}, v{acc+4*c+0}, v{acc+4*c+3}, s[{smask}:{smask+1}]")
        for c in range(8):
            A(f"v_add_f32_dpp v{res+c}, v{tmp+c}, v{res+c} row_ror:8 row_mask:0xf bank_mask:0xf")
    def tag(regs, vmask):
        for r in regs: A(f"v_and_or_b32 v{r}, v{r}, v{vmask}, s{S_TAG}")
    def msad(regs, vacc):
        for n, r in enumerate(regs):
            A(f"v_msad_u8 v{vacc}, v{r}, s{S_TAG}, {'0' if n == 0 else 'v'+str(vacc)}")
    def poll_tail(vacc, loop, sleep):
        d = A.newlabel("PD")
        A(f"v_cmp_ne_u32 vcc, 0, v{vacc}")
        A(f"s_add_u32 s{S_IT}, s{S_IT}, 1")
        A(f"s_cmp_ge_u32 s{S_IT}, {POLL_MAX}\ns_cbranch_scc1 {d}")
        A(f"s_cmp_eq_u64 vcc, 0\ns_cbranch_scc1 {d}")
        if sleep: A(f"s_sleep {sleep}")
        A(f"s_branch {loop}")
        A.label(d)
    def prog_poll(groups, vaddr, ssoff, macc, sleep):
        for (m, lds_, sm) in groups: A(f"s_mov_b64 s[{m}:{m+1}], -1")
        lp = A.newlabel("PP"); dn = A.newlabel("PPD")
        A.label(lp)
        for (m, lds_, sm) in groups:
            sk = A.newlabel("PS")
            A(f"s_mov_b64 exec, s[{m}:{m+1}]\ns_cbranch_execz {sk}")
            for (r, imm) in lds_: A(f"buffer_load_dwordx4 {vr(r)}, v{vaddr}, s[40:43], s{ssoff} offen offset:{imm} sc1")
            A.label(sk)
        A("s_waitcnt vmcnt(0)")
        for (m, lds_, sm) in groups:
            sk = A.newlabel("PS")
            A(f"s_mov_b64 exec, s[{m}:{m+1}]\ns_cbranch_execz {sk}")
            regs = [r + k for (r, imm) in lds_ for k in range(4)]
            msad(regs, macc)
            A(f"v_cmp_eq_u32 vcc, 0, v{macc}")
            A(f"s_andn2_b64 s[{m}:{m+1}], s[{m}:{m+1}], vcc\ns_mov_b64 exec, vcc")
            for n, r in enumerate(regs): A(f"v_add_f32 v{sm+n}, v{sm+n}, v{r}")
            A.label(sk)
        m0 = groups[0][0]
        A(f"s_mov_b64 s[48:49], s[{m0}:{m0+1}]")
        for (m, lds_, sm) in groups[1:]: A(f"s_or_b64 s[48:49], s[48:49], s[{m}:{m+1}]")
        A(f"s_add_u32 s{S_IT}, s{S_IT}, 1\ns_cmp_ge_u32 s{S_IT}, {POLL_MAX}\ns_cbranch_scc1 {dn}")
        A(f"s_cmp_eq_u64 s[48:49], 0\ns_cbranch_scc1 {dn}")
        if sleep: A(f"s_sleep {sleep}")
        A(f"s_branch {lp}")
        A.label(dn)
        A("s_mov_b64 exec, -1")
    def early_store():
        if est == 1: return
        if est == 2:
            A("v_lshlrev_b32 v36, 4, v1\nv_sub_u32 v3, v3, v36")
            A(f"buffer_store_dwordx4 {vr(20)}, v3, s[40:43], s46 offen sc1")
            A(f"buffer_store_dwordx4 {vr(24)}, v3, s[40:43], s46 offen offset:128 sc1")
            return
        if est == 4:
            A("s_mov_b64 exec, 1")
            A(f"buffer_store_dwordx4 {vr(20)}, v3, s[40:43], s46 offen sc1")
            A("s_mov_b64 exec, -1")
            return
        if est == 5:
            A("s_mov_b64 exec, 0xff")
            A("v_lshlrev_b32 v36, 4, v1\nv_sub_u32 v3, v3, v36")
            A(f"buffer_store_dwordx4 {vr(20)}, v3, s[40:43], s46 offen sc1")
            A("s_mov_b64 exec, -1")
            return
        if est == 6:
            A("v_lshlrev_b32 v36, 4, v1\nv_sub_u32 v3, v3, v36")
            A(f"buffer_store_dwordx4 {vr(20)}, v3, s[40:43], s46 offen sc1")
            return
        if est == 7:
            A("v_lshlrev_b32 v36, 4, v1\nv_sub_u32 v3, v3, v36")
            A(f"buffer_store_dwordx4 {vr(20)}, v3, s[40:43], s46 offen")
            A(f"buffer_store_dwordx4 {vr(24)}, v3, s[40:43], s46 offen offset:128")
            return
        if est == 8:
            A("v_lshlrev_b32 v36, 4, v1\nv_sub_u32 v3, v3, v36")
            A(f"buffer_store_dwordx4 {vr(20)}, v3, s[40:43], s46 offen sc0 sc1")
            A(f"buffer_store_dwordx4 {vr(24)}, v3, s[40:43], s46 offen offset:128 sc0 sc1")
            return
        if est == 9:
            A("v_lshlrev_b32 v36, 4, v1\nv_sub_u32 v3, v3, v36")
            A(f"buffer_store_dwordx4 {vr(20)}, v3, s[40:43], s46 offen sc1 nt")
            A(f"buffer_store_dwordx4 {vr(24)}, v3, s[40:43], s46 offen offset:128 sc1 nt")
            return
        pol = " sc1" if est == 0 else ""
        A(f"buffer_store_dwordx4 {vr(20)}, v3, s[40:43], s46 offen{pol}")
        A(f"buffer_store_dwordx4 {vr(24)}, v3, s[40:43], s46 offen offset:16{pol}")
    def load_tag():
        A(f"s_load_dword s{S_TAG}, s[26:27], {WOFF}")
    def make_tag():
        A(f"s_and_b32 s{S_TAG}, s{S_TAG}, 0xff\ns_cmp_eq_u32 s{S_TAG}, 0xff\ns_cselect_b32 s{S_TAG}, 0, s{S_TAG}\ns_add_u32 s{S_TAG}, s{S_TAG}, 1")
    def allreduce2(a0, a1, t0, t1, op):
        A(f"v_mov_b32 v{t0}, v{a0}\nv_mov_b32 v{t1}, v{a1}\ns_nop 1")
        A(f"v_permlane32_swap_b32 v{t0}, v{t1}\ns_nop 1")
        A(f"{op} v{t0}, v{t0}, v{t1}\ns_nop 0\nv_mov_b32 v{t1}, v{t0}\ns_nop 1")
        A(f"v_permlane16_swap_b32 v{t0}, v{t1}\ns_nop 1")
        A(f"{op} v{t0}, v{t0}, v{t1}\ns_nop 1")
        for r in (1, 2, 4, 8):
            A(f"{op}_dpp v{t0}, v{t0}, v{t0} row_ror:{r} row_mask:0xf bank_mask:0xf\ns_nop 1")

    hdr = []
    hdr.append(f"; @launch grid=(256,1,1) block=(512,1,1) lds={LDS_BYTES}")
    hdr.append('.amdgcn_target "amdgcn-amd-amdhsa--gfx950"')
    hdr.append(".text"); hdr.append(f".globl {NAME}_kernel"); hdr.append(".p2align 8"); hdr.append(f".type {NAME}_kernel,@function")
    hdr.append(f"{NAME}_kernel:")

    A("s_cmp_ge_u32 s2, 256\ns_cbranch_scc1 L_END")
    stamp(0)
    if diag:
        for k in range(82, 100): A(f"s_mov_b32 s{k}, 0")
    A("s_load_dwordx16 s[4:19], s[0:1], 0")
    A("s_load_dwordx8 s[20:27], s[0:1], 64")
    A("v_lshrrev_b32 v1, 6, v0\nv_and_b32 v0, 63, v0")
    A("s_and_b32 s28, s2, 7")
    A("v_readfirstlane_b32 s3, v1")
    A("s_bfe_u32 s29, s2, 0x30003")
    A("s_lshr_b32 s30, s2, 6")
    if mapm == 1:
        A("s_mov_b32 s46, s28\ns_mov_b32 s28, s29\ns_mov_b32 s29, s46")
    if mapm == 2:
        A("s_add_u32 s28, s28, 2\ns_and_b32 s28, s28, 7")
    if mapm == 3:
        A("s_xor_b32 s29, s29, 4")
    A("s_lshl_b32 s31, s30, 3\ns_add_u32 s31, s31, s28")
    A(f"s_mov_b32 s{S_SELLO}, 0x05040100\ns_mov_b32 s{S_SELHI}, 0x07060302\ns_mov_b32 s{S_IT}, 0")
    A("s_mov_b32 s56, 0xff00ff00\ns_mov_b32 s57, 0xff00ff00")
    A("s_cmp_ge_u32 s3, 4\ns_cbranch_scc1 L_X")

    LB = [64, 96, 128, 160]; SP = 192
    TB = [SP, LB[0], LB[1], LB[2]]
    ACC = 12; AV = 20
    A("s_lshl_b32 s44, s29, 3\ns_add_u32 s44, s44, s28\ns_lshl_b32 s44, s44, 21\ns_add_u32 s44, s44, 0x180000")
    A("s_lshl_b32 s45, s30, 17\ns_add_u32 s44, s44, s45")
    A("s_lshl_b32 s58, s3, 15")
    A("s_add_u32 s59, s44, s58")
    A(f"s_add_u32 s58, s58, {L_K}")
    if rotm == 0:
        A("s_lshr_b32 s45, s2, 3\ns_add_u32 s45, s45, s2\ns_lshl_b32 s46, s3, 3\ns_add_u32 s45, s45, s46")
    elif rotm == 1:
        A("s_lshr_b32 s45, s2, 3\ns_lshl_b32 s46, s3, 3\ns_add_u32 s45, s45, s46")
    elif rotm == 2:
        A("s_lshl_b32 s45, s2, 2\ns_bfe_u32 s46, s2, 0x20003\ns_add_u32 s45, s45, s46\ns_lshl_b32 s46, s3, 3\ns_add_u32 s45, s45, s46")
    elif rotm == 3:
        A("s_lshl_b32 s45, s2, 2\ns_add_u32 s45, s45, s3\ns_mul_i32 s45, s45, 0x9e3779b1\ns_lshr_b32 s45, s45, 27")
    A("v_lshrrev_b32 v1, 5, v0\nv_and_b32 v2, 31, v0\nv_xor_b32 v2, v2, v1\nv_lshlrev_b32 v2, 4, v2\nv_lshl_add_u32 v2, v1, 9, v2")
    A("v_lshrrev_b32 v1, 3, v0\nv_lshlrev_b32 v4, 12, v1\nv_and_b32 v1, 7, v0\nv_lshl_add_u32 v4, v1, 4, v4")
    A("s_lshl_b32 s46, s3, 7\nv_add_u32 v4, s46, v4")
    A("v_mov_b32 v10, 0")
    A("s_lshl_b32 s46, s3, 2\nv_mov_b32 v11, s46")
    A("s_waitcnt lgkmcnt(0)")
    A.srd(32, 6, 0x8000000)
    nissued = 0
    def throttle():
        if nissued >= D: A(f"s_waitcnt vmcnt({D-1})")
    for u in range(32):
        A(f"s_add_u32 s46, s45, {u}\ns_and_b32 s46, s46, 31\ns_lshl_b32 s47, s46, 10\ns_add_u32 s48, s47, s59\ns_add_u32 m0, s47, s58")
        A("s_lshl_b32 s49, s46, 5\ns_and_b32 s49, s49, 0xe0\nv_xor_b32 v3, s49, v2")
        A(f"buffer_load_dwordx4 v3, s[32:35], s48 offen{kvpol} lds")
        nissued += 1
        if u == min(D, 4) - 1:
            A.srd(36, 8, 0x8000000); A.srd(40, 26, 0x20000000)
            load_tag()
            A("s_barrier")
        throttle()
        if nissued - (D - 1) == 16:
            A(f"v_mov_b32 v9, 1\nds_write_b32 v11, v9 offset:{L_F}")
    done_pairs = 0
    def v_progress(complete):
        nonlocal done_pairs
        while (done_pairs + 1) * 2 <= complete:
            kb, a = divmod(done_pairs, 4)
            perms_pair(LB[kb], TB[kb], a)
            done_pairs += 1
    for n in range(32):
        kb, e = divmod(n, 8)
        if e == 0: A(f"s_add_u32 s48, s44, {kb*32768}")
        A(f"buffer_load_dwordx4 {vr(LB[kb] + 4*e)}, v4, s[36:39], s48 offen offset:{e*512}{kvpol}")
        nissued += 1
        throttle()
        comp = nissued - (D - 1)
        if comp == 32:
            A(f"v_mov_b32 v9, 2\nds_write_b32 v11, v9 offset:{L_F}")
            stamp(1)
        v_progress(comp - 32)
        if n == VT - 1:
            assert comp > 32
            A(f"v_mov_b32 v9, 3\nds_write_b32 v11, v9 offset:{L_F}")
    stamp(2)
    A("s_setprio 3")
    A("s_waitcnt lgkmcnt(0)")
    make_tag()
    A("v_and_b32 v1, 15, v0\nv_lshrrev_b32 v2, 4, v0")
    A("v_bfe_u32 v3, v1, 1, 1\nv_lshlrev_b32 v3, 9, v3")
    A("v_lshl_add_u32 v3, v2, 5, v3\nv_and_b32 v9, 1, v1\nv_lshl_add_u32 v3, v9, 4, v3")
    A(f"v_add_u32 v3, {L_PB}, v3\nv_mov_b32 v9, {L_ZERO}\nv_lshrrev_b32 v1, 2, v1")
    for q in range(4):
        A(f"v_cmp_eq_u32 vcc, {q}, v1\ns_nop 1\nv_cndmask_b32 v{5+q}, v9, v3, vcc")
    A("v_bfe_u32 v1, v0, 3, 1\nv_lshlrev_b32 v1, 15, v1")
    A("v_and_b32 v3, 7, v0\nv_lshl_add_u32 v1, v3, 5, v1\nv_lshl_add_u32 v1, v2, 3, v1")
    A("s_lshl_b32 s46, s28, 2\ns_lshr_b32 s47, s3, 1\ns_add_u32 s46, s46, s47\ns_lshl_b32 s46, s46, 14")
    A("s_lshl_b32 s47, s29, 11\ns_add_u32 s46, s46, s47\ns_lshl_b32 s47, s30, 9\ns_add_u32 s46, s46, s47")
    A(f"s_and_b32 s47, s3, 1\ns_lshl_b32 s47, s47, 8\ns_add_u32 s46, s46, s47\ns_add_u32 s60, s46, {OP}")
    A("v_mov_b32 v36, 0xffffff00")
    A(f"v_bfe_u32 v37, v0, 3, 1\nv_lshlrev_b32 v37, 2, v37")
    if not so: lds_wait4(L_XQ, 3, 40, 10)
    def pv(kb, first):
        for q in range(4): A(f"ds_read_b128 {vr(AV+4*q)}, v{5+q} offset:{kb*128}")
        for c in range(8):
            if c < 4: A(f"s_waitcnt lgkmcnt({3-c})")
            a = ACC + 4*(c >> 2)
            cin = "0" if (first and (c & 3) == 0) else vr(a)
            A(f"v_mfma_f32_16x16x32_bf16 {vr(a)}, {vr(AV+4*(c&3))}, {vr(TB[kb]+4*c)}, {cin}")
    assert D <= 9
    for kb in range(3):
        assert done_pairs >= 4*(kb+1)
        pv(kb, kb == 0)
    if not so: lds_wait1(10, L_SC, 1, 40)
    A(f"ds_read_b32 v38, v37 offset:{L_SC+8}")
    for w in range(D - 2, -1, -1):
        A(f"s_waitcnt vmcnt({w})")
        v_progress(32 - w)
    stamp(3)
    A(f"v_mov_b32 v9, 4\nds_write_b32 v11, v9 offset:{L_F}")
    pv(3, False)
    A("s_nop 7")
    for a in range(2):
        b_ = ACC + 4*a
        A(f"v_cndmask_b32 v{42+a}, v{b_+2}, v{b_+1}, s[56:57]")
        A(f"v_cndmask_b32 v{40+a}, v{b_+0}, v{b_+3}, s[56:57]")
    A("s_nop 0")
    for a in range(2):
        A(f"v_add_f32_dpp v{40+a}, v{42+a}, v{40+a} row_ror:8 row_mask:0xf bank_mask:0xf")
    A("v_mul_f32 v40, v40, v38\nv_mul_f32 v41, v41, v38")
    tag([40, 41], 36)
    A("buffer_store_dwordx2 v[40:41], v1, s[40:43], s60 offen sc1")
    stamp(4)
    if diag:
        stamp_store(0, [0, 1, 2, 3, 4], wavemul=5)
    A("s_endpgm")

    A.label("L_X")
    if so and abl == 0: A("s_barrier\ns_endpgm")
    A("s_setprio 3")
    A("s_sub_u32 s61, s3, 4")
    A("v_and_b32 v1, 7, v0\nv_lshrrev_b32 v2, 3, v0")
    A("v_and_b32 v5, 15, v0\nv_lshrrev_b32 v6, 4, v0")
    A("v_and_b32 v7, 1, v5\nv_lshl_add_u32 v7, v6, 1, v7")
    A("v_lshrrev_b32 v16, 1, v5")
    A("v_mov_b32 v17, 0\nv_mov_b32 v18, 0xffffff00")
    A(f"v_mov_b32 v19, {OOB}")
    A("v_mul_u32_u24 v4, 896, v16\nv_lshl_add_u32 v4, v7, 4, v4")
    A("v_cmp_eq_u32 vcc, 7, v7\ns_nop 1\nv_cndmask_b32 v4, v4, v19, vcc")
    A("v_cmp_eq_u32 s[62:63], 7, v2")
    A("s_waitcnt lgkmcnt(0)")
    A.srd(40, 26, 0x20000000); A.srd(32, 4, 7168)
    load_tag()
    XL = [64, 96, 128]; XT = [160, 192]; XACC = 224; XA = [8, 12]; XRES = 20; XTMP = 28
    A("s_cmp_eq_u32 s3, 5\ns_cbranch_scc1 L_X5\ns_cmp_eq_u32 s3, 6\ns_cbranch_scc1 L_X6\ns_cmp_eq_u32 s3, 7\ns_cbranch_scc1 L_X7")
    A.srd(36, 10, 448*4096*2)
    A("v_lshlrev_b32 v3, 16, v2\nv_lshl_add_u32 v3, v1, 4, v3\nv_cndmask_b32 v3, v3, v19, s[62:63]")
    A(f"s_mul_i32 s46, s30, {112*8192}\ns_lshl_b32 s47, s28, 3\ns_add_u32 s47, s47, s29\ns_lshl_b32 s47, s47, 7\ns_add_u32 s46, s46, s47")
    A("s_mul_i32 s47, s30, 224")
    for blk in range(2):
        for e in range(8):
            A(f"s_add_u32 s48, s46, {(56*blk+e)*8192}")
            A(f"buffer_load_dwordx4 {vr(XL[blk]+4*e)}, v3, s[36:39], s48 offen{wpol}")
        A(f"buffer_load_dwordx4 {vr(XA[blk])}, v4, s[32:35], s47 offen offset:{112*blk}")
    A("s_barrier")
    A("v_lshlrev_b32 v3, 16, v2\nv_lshl_add_u32 v3, v1, 5, v3")
    A("s_lshl_b32 s46, s28, 1\ns_lshr_b32 s47, s29, 2\ns_add_u32 s46, s46, s47\ns_lshl_b32 s46, s46, 12")
    A(f"s_lshl_b32 s47, s30, 10\ns_add_u32 s46, s46, s47\ns_and_b32 s47, s29, 3\ns_lshl_b32 s47, s47, 8\ns_add_u32 s46, s46, s47\ns_add_u32 s46, s46, {QP}")
    A("s_waitcnt vmcnt(9)")
    perms(XL[0], XT[0]); A("s_nop 1"); mfma8(XACC, XA[0], XT[0], True)
    A("s_waitcnt vmcnt(0)")
    perms(XL[1], XT[1]); A("s_nop 1"); mfma8(XACC, XA[1], XT[1], False)
    A("s_waitcnt lgkmcnt(0)"); make_tag(); A("s_nop 3")
    extract8(XACC, XRES, XTMP, 56)
    tag(range(XRES, XRES+8), 18)
    early_store()
    stamp(1)
    A("s_branch L_XMID")
    A.label("L_X5")
    A.srd(36, 16, 448*1792*2)
    A(f"v_mul_u32_u24 v3, {8*3584}, v2\nv_lshl_add_u32 v3, v1, 4, v3\nv_cndmask_b32 v3, v3, v19, s[62:63]")
    A(f"s_mul_i32 s46, s29, {56*3584}\ns_lshl_b32 s47, s31, 7\ns_add_u32 s46, s46, s47")
    A("s_mul_i32 s47, s29, 112")
    A("s_cmp_ge_u32 s31, 28\ns_cbranch_scc1 L_X5S")
    for e in range(8):
        A(f"s_add_u32 s48, s46, {e*3584}")
        A(f"buffer_load_dwordx4 {vr(XL[0]+4*e)}, v3, s[36:39], s48 offen{wpol}")
    A(f"buffer_load_dwordx4 {vr(XA[0])}, v4, s[32:35], s47 offen")
    A("s_barrier")
    A("v_lshlrev_b32 v3, 11, v2\nv_lshl_add_u32 v3, v1, 5, v3")
    A(f"s_lshl_b32 s46, s31, 14\ns_lshl_b32 s47, s29, 8\ns_add_u32 s46, s46, s47\ns_add_u32 s46, s46, {HP}")
    A("s_waitcnt vmcnt(0)")
    perms(XL[0], XT[0]); A("s_nop 1"); mfma8(XACC, XA[0], XT[0], True)
    A("s_waitcnt lgkmcnt(0)"); make_tag(); A("s_nop 3")
    extract8(XACC, XRES, XTMP, 56)
    tag(range(XRES, XRES+8), 18)
    early_store()
    A("s_branch L_XMID")
    A.label("L_X5S")
    A("s_barrier\ns_waitcnt lgkmcnt(0)"); make_tag()
    A("s_branch L_XMID")
    A.label("L_X6")
    A.srd(36, 20, 896)
    A("v_lshlrev_b32 v3, 4, v0\nv_cmp_gt_u32 vcc, 56, v0\ns_nop 1\nv_cndmask_b32 v3, v19, v3, vcc")
    A("s_mul_i32 s47, s29, 896")
    A("buffer_load_dwordx4 v[8:11], v3, s[32:35], s47 offen")
    A("buffer_load_dwordx4 v[12:15], v3, s[36:39], 0 offen")
    A("s_barrier")
    A("s_waitcnt vmcnt(0)")
    A("v_mov_b32 v20, 0")
    for k in range(4):
        A(f"v_lshlrev_b32 v21, 16, v{8+k}\nv_and_b32 v22, 0xffff0000, v{8+k}\nv_lshlrev_b32 v23, 16, v{12+k}\nv_and_b32 v24, 0xffff0000, v{12+k}")
        A("v_mul_f32 v21, v21, v23\nv_mul_f32 v22, v22, v24\nv_cvt_pk_bf16_f32 v21, v21, v22")
        A("v_lshlrev_b32 v22, 16, v21\nv_and_b32 v21, 0xffff0000, v21\nv_add_f32 v20, v20, v22\nv_add_f32 v20, v20, v21")
    allreduce2(20, 20, 21, 22, "v_add_f32")
    A("v_cvt_pk_bf16_f32 v21, v21, v21\nv_lshlrev_b32 v21, 16, v21")
    A("v_mul_f32 v21, 0xbfb8aa3b, v21\nv_exp_f32 v21, v21\ns_nop 0\nv_add_f32 v21, 1.0, v21\nv_rcp_f32 v21, v21\ns_nop 0")
    A("v_cvt_pk_bf16_f32 v21, v21, v21\nv_lshlrev_b32 v22, 16, v21")
    A("v_sub_f32 v23, 1.0, v22\nv_cvt_pk_bf16_f32 v23, v23, v23\nv_lshlrev_b32 v23, 16, v23")
    A(f"ds_write_b64 v17, v[22:23] offset:{L_G}")
    A("s_waitcnt lgkmcnt(0)"); make_tag()
    A("s_branch L_XMID")
    A.label("L_X7")
    A("v_lshlrev_b32 v3, 4, v0\nv_mov_b32 v8, 0\nv_mov_b32 v9, 0\nv_mov_b32 v10, 0\nv_mov_b32 v11, 0")
    A(f"ds_write_b128 v3, v[8:11] offset:{L_ZERO}")
    A("s_waitcnt lgkmcnt(0)\ns_barrier")
    make_tag()

    A.label("L_XMID")
    if abl == 1: A("s_endpgm")
    A("s_lshl_b32 s46, s61, 2\nv_mov_b32 v36, s46")
    A("s_lshl_b32 s46, s29, 4\ns_lshl_b32 s47, s28, 1\ns_add_u32 s46, s46, s47\ns_lshr_b32 s47, s61, 1\ns_add_u32 s46, s46, s47\ns_lshl_b32 s46, s46, 12")
    A(f"s_and_b32 s47, s61, 1\ns_lshl_b32 s47, s47, 9\ns_add_u32 s46, s46, s47\ns_add_u32 s60, s46, {QP}")
    A("v_lshlrev_b32 v3, 3, v0")
    A(f"s_lshl_b32 s46, s61, 8\ns_add_u32 s46, s46, {L_QB}\nv_lshlrev_b32 v37, 2, v0\nv_add_u32 v37, s46, v37")
    if qgate: lds_wait1(36, L_F, qgate, 40)
    stamp(2)
    lp = A.newlabel("QPOLL"); A.label(lp)
    for r in range(4): A(f"buffer_load_dwordx2 v[{40+2*r}:{41+2*r}], v3, s[40:43], s60 offen offset:{r*1024} sc1")
    A("s_waitcnt vmcnt(0)")
    msad(range(40, 48), 38)
    poll_tail(38, lp, sleep_q)
    A("v_add_f32 v40, v40, v42\nv_add_f32 v41, v41, v43\nv_add_f32 v44, v44, v46\nv_add_f32 v45, v45, v47\nv_add_f32 v40, v40, v44\nv_add_f32 v41, v41, v45")
    A("v_cvt_pk_bf16_f32 v40, v40, v41\nds_write_b32 v37, v40")
    A(f"v_mov_b32 v38, 1\ns_waitcnt lgkmcnt(0)\nds_write_b32 v36, v38 offset:{L_XQ}")
    stamp(3)
    if abl == 2: A("s_endpgm")
    A("v_xor_b32 v39, v6, v5\nv_lshlrev_b32 v39, 4, v39\nv_lshl_add_u32 v39, v5, 9, v39\ns_lshl_b32 s46, s61, 15\ns_add_u32 s46, s46, 8192\nv_add_u32 v48, s46, v39")
    A("v_xor_b32 v49, 64, v48\nv_xor_b32 v50, 0x80, v48\nv_xor_b32 v51, 0xc0, v48")
    A(f"v_and_b32 v39, 1, v5\nv_lshlrev_b32 v39, 9, v39\nv_lshl_add_u32 v39, v6, 4, v39")
    lds_wait4(L_XQ, 1, 40, 17)
    QA = 64; KB_ = 96; SACC = 224
    for t in range(8): A(f"ds_read_b128 {vr(QA+4*t)}, v39 offset:{L_QB + 64*t}")
    lds_wait1(36, L_F, 2, 40)
    stamp(4)
    order = [(tau, t) for t in range(8) for tau in range(4)]
    def kread(n):
        tau, t = order[n]
        A(f"ds_read_b128 {vr(KB_+4*n)}, v{48+(t&3)} offset:{(t>>2)*256 + tau*8192}")
    INF = 8
    for n in range(INF): kread(n)
    for n in range(32):
        tau, t = order[n]
        rem = min(INF - 1, 31 - n)
        A(f"s_waitcnt lgkmcnt({rem})")
        cin = "0" if t == 0 else vr(SACC+4*tau)
        A(f"v_mfma_f32_16x16x32_bf16 {vr(SACC+4*tau)}, {vr(QA+4*t)}, {vr(KB_+4*n)}, {cin}")
        if n + INF < 32: kread(n + INF)
    A("v_cmp_eq_u32 s[64:65], 1, v6\nv_cmp_eq_u32 s[66:67], 2, v6\nv_cmp_eq_u32 s[68:69], 3, v6\ns_nop 5")
    for h in range(2):
        A(f"v_cndmask_b32 v{40+h}, v{SACC+h}, v{SACC+4+h}, s[64:65]")
        A(f"v_cndmask_b32 v{40+h}, v{40+h}, v{SACC+8+h}, s[66:67]")
        A(f"v_cndmask_b32 v{40+h}, v{40+h}, v{SACC+12+h}, s[68:69]")
    allreduce2(40, 41, 42, 43, "v_max_f32")
    A(f"v_lshrrev_b32 v44, 5, v0\nv_lshlrev_b32 v44, 2, v44\ns_lshl_b32 s46, s61, 3\nv_add_u32 v44, s46, v44")
    A(f"ds_write_b32 v44, v42 offset:{L_M}")
    A(f"v_mov_b32 v38, 2\ns_waitcnt lgkmcnt(0)\nds_write_b32 v36, v38 offset:{L_XQ}")
    lds_wait4(L_XQ, 2, 52, 17)
    A(f"ds_read_b128 v[52:55], v17 offset:{L_M}\nds_read_b128 v[56:59], v17 offset:{L_M+16}\ns_waitcnt lgkmcnt(0)")
    A("v_max_f32 v52, v52, v54\nv_max3_f32 v52, v52, v56, v58\nv_max_f32 v53, v53, v55\nv_max3_f32 v53, v53, v57, v59")
    A("s_mov_b32 s47, 0x3db8aa3b")
    A("v_sub_f32 v40, v40, v52\nv_sub_f32 v41, v41, v53\nv_mul_f32 v40, s47, v40\nv_mul_f32 v41, s47, v41\nv_exp_f32 v40, v40\nv_exp_f32 v41, v41\ns_nop 0")
    A(f"v_cvt_pk_bf16_f32 v45, v40, v41\ns_lshl_b32 s46, s61, 7\ns_add_u32 s46, s46, {L_PB}\nv_lshlrev_b32 v46, 1, v0\nv_add_u32 v46, s46, v46")
    A("ds_write_b16 v46, v45\nds_write_b16_d16_hi v46, v45 offset:512")
    allreduce2(40, 41, 42, 43, "v_add_f32")
    A(f"ds_write_b32 v44, v42 offset:{L_L}")
    A(f"v_mov_b32 v38, 3\ns_waitcnt lgkmcnt(0)\nds_write_b32 v36, v38 offset:{L_XQ}")
    stamp(5)
    if abl == 3: A("s_endpgm")
    if abl == 4: A("s_cmp_eq_u32 s3, 4\ns_cbranch_scc1 L_END\ns_cmp_eq_u32 s3, 7\ns_cbranch_scc1 L_END")
    A("s_cmp_eq_u32 s3, 5\ns_cbranch_scc1 L_Y5\ns_cmp_eq_u32 s3, 6\ns_cbranch_scc1 L_Y6\ns_cmp_eq_u32 s3, 7\ns_cbranch_scc1 L_Y7")

    A("s_cmp_eq_u32 s29, 7\ns_cbranch_scc1 L_Y4END")
    A.srd(36, 12, 4096*448*2)
    A("v_mul_u32_u24 v3, 7168, v2\nv_lshl_add_u32 v3, v1, 4, v3")
    A("s_lshl_b32 s58, s28, 2\ns_add_u32 s58, s58, s30")
    A(f"s_mul_i32 s46, s58, {128*896}\ns_lshl_b32 s47, s29, 7\ns_add_u32 s59, s46, s47")
    A("v_lshlrev_b32 v4, 11, v16\nv_lshl_add_u32 v4, v7, 5, v4")
    A(f"s_lshl_b32 s60, s58, 14\ns_add_u32 s60, s60, {OP}")
    A(f"v_mul_u32_u24 v36, {28*2048}, v2\nv_lshrrev_b32 v37, 1, v1\nv_lshl_add_u32 v36, v37, 11, v36\nv_and_b32 v37, 1, v1\nv_lshl_add_u32 v36, v37, 5, v36")
    A(f"s_lshl_b32 s46, s29, 13\ns_lshl_b32 s47, s58, 6\ns_add_u32 s46, s46, s47\ns_add_u32 s62, s46, {FP}")
    A(f"s_mul_i32 s46, s28, 28\ns_lshl_b32 s47, s29, 2\ns_add_u32 s46, s46, s47\ns_add_u32 s46, s46, s30\ns_lshl_b32 s63, s46, 11\ns_add_u32 s63, s63, {FP}")
    A("v_lshlrev_b32 v37, 4, v0")
    A("v_lshlrev_b32 v38, 5, v0")
    lds_wait4(L_F, 3, 40, 17)
    WL = [64, 96]; WT = [128, 64]; G0 = 160
    for blk in range(2):
        A(f"s_add_u32 s46, s59, {blk*64*896}\ns_add_u32 s47, s46, 3584")
        for e in range(8):
            A(f"buffer_load_dwordx4 {vr(WL[blk]+4*e)}, v3, s[36:39], s{46 + (e&1)} offen offset:{(e>>1)*896}{wpol}")
    A("s_waitcnt vmcnt(8)")
    perms(WL[0], WT[0])
    A("s_waitcnt vmcnt(0)")
    perms(WL[1], WT[1])
    stamp(6)
    SUM = 96
    for k in range(16): A(f"v_mov_b32 v{SUM+k}, 0")
    groups = []
    for blk in range(2):
        for s_ in range(4):
            k = blk*4 + s_
            groups.append((64 + 2*k, [(G0 + k*8 + hh*4, s_*512 + blk*256 + hh*16) for hh in range(2)], SUM + 8*blk))
    lds_wait4(L_F, 4, 40, 17)
    prog_poll(groups, 4, 60, 39, sleep_o)
    stamp(7)
    for blk in range(2):
        g = SUM + blk*8
        for k in range(4): A(f"v_cvt_pk_bf16_f32 v{XA[blk]+k}, v{g+2*k}, v{g+2*k+1}")
    A("s_nop 1")
    for blk in range(2):
        mfma8(XACC, XA[blk], WT[blk], blk == 0)
    lds_wait1(17, L_W2F, 1, 40)
    A(f"ds_read_b128 v[40:43], v38 offset:{L_W2R}\nds_read_b128 v[44:47], v38 offset:{L_W2R+16}")
    A("s_nop 4")
    extract8(XACC, XRES, XTMP, 56)
    A("s_waitcnt lgkmcnt(0)")
    for k in range(8): A(f"v_add_f32 v{XRES+k}, v{XRES+k}, v{40+k}")
    tag(range(XRES, XRES+8), 18)
    A(f"buffer_store_dwordx4 {vr(XRES)}, v36, s[40:43], s62 offen sc1")
    A(f"buffer_store_dwordx4 {vr(XRES+4)}, v36, s[40:43], s62 offen offset:16 sc1")
    stamp(8)
    A.srd(36, 22, 7168)
    A("v_and_b32 v3, 3, v0\nv_lshlrev_b32 v3, 2, v3\nv_and_b32 v4, 1, v6\nv_lshl_add_u32 v3, v4, 1, v3\nv_lshrrev_b32 v4, 1, v6\nv_add_u32 v3, v3, v4\nv_lshlrev_b32 v3, 1, v3")
    A("v_cmp_gt_u32 vcc, 4, v5\ns_nop 1\nv_cndmask_b32 v3, v19, v3, vcc")
    A("s_mul_i32 s46, s28, 896\ns_lshl_b32 s47, s29, 7\ns_add_u32 s46, s46, s47\ns_lshl_b32 s47, s30, 5\ns_add_u32 s59, s46, s47")
    for k in range(4): A(f"v_mov_b32 v{40+k}, 0")
    prog_poll([(64, [(44, 0)], 40), (66, [(48, 1024)], 40)], 37, 63, 39, sleep_f)
    A("s_nop 1\nv_permlane32_swap_b32 v40, v41\nv_permlane32_swap_b32 v42, v43\ns_nop 1")
    A("v_add_f32 v40, v40, v41\nv_add_f32 v42, v42, v43\ns_nop 1\nv_permlane16_swap_b32 v40, v42\ns_nop 1\nv_add_f32 v40, v40, v42\ns_nop 1")
    A("v_add_f32_dpp v40, v40, v40 row_ror:4 row_mask:0xf bank_mask:0xf\ns_nop 1")
    A("v_add_f32_dpp v40, v40, v40 row_ror:8 row_mask:0xf bank_mask:0xf")
    A("v_cvt_pk_bf16_f32 v40, v40, v40")
    A("buffer_store_short v40, v3, s[36:39], s59 offen")
    A("s_cmp_lg_u32 s2, 0\ns_cbranch_scc1 L_Y4END")
    A(f"v_mov_b32 v40, s{S_TAG}\nv_cmp_eq_u32 vcc, 0, v0\ns_nop 1\nv_cndmask_b32 v3, v19, v17, vcc")
    A(f"buffer_store_dword v40, v3, s[40:43], 0 offen offset:{WOFF}")
    A.label("L_Y4END")
    if diag:
        stamp(9)
        stamp_store(24, [1, 2, 3, 4, 5, 6, 7, 8, 9])
    A("s_endpgm")

    A.label("L_Y5")
    A("s_cmp_ge_u32 s31, 28\ns_cbranch_scc1 L_END")
    A(f"s_lshl_b32 s46, s31, 14\ns_lshl_b32 s47, s29, 11\ns_add_u32 s46, s46, s47\ns_add_u32 s60, s46, {HP}")
    A(f"s_lshl_b32 s46, s31, 11\ns_lshl_b32 s47, s29, 8\ns_add_u32 s46, s46, s47\ns_add_u32 s59, s46, {HF}")
    A("v_lshlrev_b32 v3, 2, v0")
    A(f"ds_read_b64 v[52:53], v17 offset:{L_G}")
    lp = A.newlabel("HPOLL"); A.label(lp)
    for r in range(8): A(f"buffer_load_dword v{40+r}, v3, s[40:43], s60 offen offset:{r*256} sc1")
    A("s_waitcnt vmcnt(0) lgkmcnt(0)")
    msad(range(40, 48), 39)
    poll_tail(39, lp, 8)
    A("v_add_f32 v40, v40, v41\nv_add_f32 v42, v42, v43\nv_add_f32 v44, v44, v45\nv_add_f32 v46, v46, v47\nv_add_f32 v40, v40, v42\nv_add_f32 v44, v44, v46\nv_add_f32 v40, v40, v44")
    A("v_cvt_pk_bf16_f32 v40, v40, v40\nv_lshlrev_b32 v40, 16, v40")
    A("v_mul_f32 v41, 0xbfb8aa3b, v40\nv_exp_f32 v41, v41\ns_nop 0\nv_add_f32 v41, 1.0, v41\nv_rcp_f32 v41, v41\ns_nop 0\nv_mul_f32 v40, v40, v41")
    A("v_cvt_pk_bf16_f32 v40, v40, v40\nv_lshlrev_b32 v40, 16, v40\nv_mul_f32 v40, v40, v53")
    tag([40], 18)
    A("buffer_store_dword v40, v3, s[40:43], s59 offen sc1")
    A("s_endpgm")

    A.label("L_Y6")
    lds_wait4(L_XQ, 3, 40, 17)
    A(f"ds_read_b128 v[40:43], v17 offset:{L_L}\nds_read_b128 v[44:47], v17 offset:{L_L+16}\nds_read_b64 v[60:61], v17 offset:{L_G}\ns_waitcnt lgkmcnt(0)")
    A("v_add_f32 v40, v40, v42\nv_add_f32 v44, v44, v46\nv_add_f32 v40, v40, v44\nv_add_f32 v41, v41, v43\nv_add_f32 v45, v45, v47\nv_add_f32 v41, v41, v45")
    A("v_and_b32 v42, 1, v0\nv_cmp_eq_u32 vcc, 1, v42\ns_nop 1\nv_cndmask_b32 v44, v52, v53, vcc\nv_cndmask_b32 v46, v40, v41, vcc")
    A("v_lshlrev_b32 v45, 8, v44\nv_mov_b32 v47, v46")
    tag([44, 45, 46, 47], 18)
    A(f"s_lshl_b32 s46, s29, 3\ns_add_u32 s46, s46, s28\ns_lshl_b32 s46, s46, 8\ns_add_u32 s60, s46, {ML}\ns_lshl_b32 s47, s30, 6\ns_add_u32 s59, s60, s47")
    A("v_lshlrev_b32 v3, 4, v0\nv_cmp_gt_u32 vcc, 4, v0\ns_nop 1\nv_cndmask_b32 v4, v19, v3, vcc")
    A("buffer_store_dwordx4 v[44:47], v4, s[40:43], s59 offen sc1")
    A("v_and_b32 v3, 0xff, v3")
    lp = A.newlabel("MPOLL"); A.label(lp)
    A("buffer_load_dwordx4 v[44:47], v3, s[40:43], s60 offen sc1")
    A("s_waitcnt vmcnt(0)")
    msad(range(44, 48), 39)
    poll_tail(39, lp, 8)
    A("v_bfe_u32 v45, v45, 8, 8\nv_and_or_b32 v44, v44, v18, v45")
    A("v_mov_b32 v48, v44\ns_nop 1\nv_max_f32_dpp v48, v48, v48 row_ror:4 row_mask:0xf bank_mask:0xf\ns_nop 1\nv_max_f32_dpp v48, v48, v48 row_ror:8 row_mask:0xf bank_mask:0xf")
    A("s_mov_b32 s47, 0x3db8aa3b")
    A("v_sub_f32 v44, v44, v48\nv_mul_f32 v44, s47, v44\nv_exp_f32 v44, v44\ns_nop 0\nv_mul_f32 v46, v46, v44\ns_nop 1")
    A("v_add_f32_dpp v46, v46, v46 row_ror:4 row_mask:0xf bank_mask:0xf\ns_nop 1\nv_add_f32_dpp v46, v46, v46 row_ror:8 row_mask:0xf bank_mask:0xf")
    A("v_cmp_eq_u32 vcc, 1, v42\ns_nop 1\nv_cndmask_b32 v44, v52, v53, vcc")
    A("v_sub_f32 v44, v44, v48\nv_mul_f32 v44, s47, v44\nv_exp_f32 v44, v44\nv_rcp_f32 v46, v46\ns_nop 0\nv_mul_f32 v44, v44, v46\nv_mul_f32 v44, v44, v60")
    A(f"v_lshlrev_b32 v42, 2, v42\nds_write_b32 v42, v44 offset:{L_SC+8}")
    A(f"v_mov_b32 v38, 1\ns_waitcnt lgkmcnt(0)\nds_write_b32 v17, v38 offset:{L_SC}")
    if diag:
        stamp(6)
        stamp_store(36, [6])
    A("s_endpgm")

    A.label("L_Y7")
    A("s_cmp_eq_u32 s29, 7\ns_cbranch_scc1 L_END")
    A("v_lshlrev_b32 v38, 5, v0")
    A("s_cmp_ge_u32 s31, 28\ns_cbranch_scc1 L_Y7Z")
    A.srd(36, 18, 1792*448*2)
    A("v_mul_u32_u24 v3, 7168, v2\nv_lshl_add_u32 v3, v1, 4, v3")
    A(f"s_mul_i32 s46, s31, {64*896}\ns_lshl_b32 s47, s29, 7\ns_add_u32 s58, s46, s47\ns_add_u32 s59, s58, 3584")
    A("v_lshlrev_b32 v4, 8, v16\nv_lshl_add_u32 v4, v7, 5, v4")
    A(f"s_lshl_b32 s60, s31, 11\ns_add_u32 s60, s60, {HF}")
    lds_wait4(L_F, 3, 40, 17)
    for e in range(8):
        A(f"buffer_load_dwordx4 {vr(64+4*e)}, v3, s[36:39], s{58 + (e>>2)} offen offset:{(e&3)*896}{wpol}")
    lp = A.newlabel("H2POLL"); A.label(lp)
    A("buffer_load_dwordx4 v[40:43], v4, s[40:43], s60 offen sc1\nbuffer_load_dwordx4 v[44:47], v4, s[40:43], s60 offen offset:16 sc1")
    A("s_waitcnt vmcnt(0)")
    msad(range(40, 48), 39)
    poll_tail(39, lp, 4)
    for k in range(4): A(f"v_cvt_pk_bf16_f32 v{8+k}, v{40+2*k}, v{41+2*k}")
    perms(64, 96); A("s_nop 1")
    mfma8(XACC, 8, 96, True)
    A("s_nop 7")
    extract8(XACC, XRES, XTMP, 56)
    A.label("L_Y7W")
    A(f"ds_write_b128 v38, {vr(XRES)} offset:{L_W2R}\nds_write_b128 v38, {vr(XRES+4)} offset:{L_W2R+16}")
    A(f"v_mov_b32 v39, 1\ns_waitcnt lgkmcnt(0)\nds_write_b32 v17, v39 offset:{L_W2F}")
    A("s_endpgm")
    A.label("L_Y7Z")
    for k in range(8): A(f"v_mov_b32 v{XRES+k}, 0")
    A("s_branch L_Y7W")

    A.label("L_END")
    A("s_endpgm")
    tail = ['.section .rodata,"a"', ".p2align 6", f".amdhsa_kernel {NAME}_kernel",
            "  .amdhsa_next_free_vgpr 256", "  .amdhsa_next_free_sgpr 100", "  .amdhsa_accum_offset 256",
            "  .amdhsa_group_segment_fixed_size 0", "  .amdhsa_kernarg_size 96", "  .amdhsa_user_sgpr_count 2",
            "  .amdhsa_user_sgpr_kernarg_segment_ptr 1", "  .amdhsa_system_sgpr_workgroup_id_x 1",
            "  .amdhsa_float_denorm_mode_32 3", ".end_amdhsa_kernel"]
    return "\n".join(hdr + A.L + tail) + "\n"

if __name__ == "__main__":
    import argparse
    ap = argparse.ArgumentParser()
    ap.add_argument("-o", default="k.s")
    ap.add_argument("--D", type=int, default=6)
    ap.add_argument("--diag", action="store_true")
    ap.add_argument("--qgate", type=int, default=1)
    ap.add_argument("--VT", type=int, default=32)
    ap.add_argument("--so", action="store_true")
    ap.add_argument("--dbgst", action="store_true")
    ap.add_argument("--kvpol", default=" nt")
    ap.add_argument("--est", type=int, default=0)
    ap.add_argument("--abl", type=int, default=0)
    ap.add_argument("--wpol", default=" nt")
    ap.add_argument("--rotm", type=int, default=0)
    ap.add_argument("--mapm", type=int, default=0)
    a = ap.parse_args()
    open(a.o, "w").write(gen(D=a.D, diag=a.diag, qgate=a.qgate, VT=a.VT, so=a.so, rotm=a.rotm, mapm=a.mapm, abl=a.abl, dbgst=a.dbgst, kvpol=a.kvpol, est=a.est, wpol=a.wpol))
```

```python
import sys
NAME = "gated_mix__sliding_block_cached__dense_activation_silu__decode"

import os
XB = int(os.environ.get("XB", "0"), 0)
WOFF = 0
QP = XB + 0x1000
HP = QP + 0x80000
HF = HP + 0x70000
ML = HF + 0xE000
OP = ML + 0x4000
FP = OP + 0x80000
assert FP + 0x70000 <= XB + 0x200000
STAMP = 0x10000000
L_K = 8192
L_QB = 0
L_PB = L_QB + 1024
L_ZERO = L_PB + 1024
L_MISC = L_ZERO + 512
L_F = L_MISC
L_XQ = L_MISC + 16
L_SC = L_MISC + 32
L_W2F = L_MISC + 48
L_G = L_MISC + 64
L_M = L_MISC + 80
L_L = L_MISC + 112
L_W2R = L_MISC + 512
assert L_W2R + 2048 <= L_K
LDS_BYTES = L_K + 131072

OOB = 0x40000000
POLL_MAX = 200000

class E:
    def __init__(self):
        self.L = []
        self.n = 0
    def __call__(self, s):
        for x in s.split("\n"):
            x = x.strip()
            if x: self.L.append("    " + x)
    def label(self, s): self.L.append(s + ":")
    def newlabel(self, p="L"):
        self.n += 1
        return f"{p}_{self.n}"
    def srd(self, d, b, n):
        self(f"s_mov_b32 s{d}, s{b}\ns_mov_b32 s{d+1}, s{b+1}\ns_mov_b32 s{d+2}, {n}\ns_mov_b32 s{d+3}, 0x20000")

def vr(b, n=4): return f"v[{b}:{b+n-1}]"

def gen(D=6, diag=False, qgate=1, sleep_q=4, sleep_o=0, sleep_f=0, wpol=" nt", VT=32, rotm=0, so=False, mapm=0, abl=0, est=0, kvpol=" nt", dbgst=False, delay=0):
    A = E()
    S_TAG = 50; S_SELLO = 52; S_SELHI = 53; S_IT = 54
    NST = 8
    def stamp(k):
        if diag: A(f"s_memrealtime s[{80+2*k}:{81+2*k}]")
    def stamp_store(slot0, ks, wavemul=0):
        if not diag: return
        A("s_waitcnt lgkmcnt(0)")
        A("s_mov_b64 exec, 1")
        if dbgst:
            A.srd(36, 24, 256)
            base = {0: 0, 24: 6, 36: 15}[slot0]
            for n, k in enumerate(ks):
                A(f"v_mov_b32 v2, {4*(base+n+(1 if slot0 == 0 else 0))}\nv_mov_b32 v4, s{80+2*k}")
                A("buffer_atomic_umax v4, v2, s[36:39], 0 offen\ns_nop 1")
                if slot0 == 0 and k == 0:
                    A(f"s_not_b32 s46, s80\nv_mov_b32 v2, 0\nv_mov_b32 v4, s46\nbuffer_atomic_umax v4, v2, s[36:39], 0 offen\ns_nop 1")
            A("s_mov_b64 exec, -1")
            return
        for n, k in enumerate(ks):
            A(f"s_lshl_b32 s46, s2, 9\ns_add_u32 s46, s46, {STAMP + 8*(slot0+n)}\ns_mul_i32 s47, s3, {8*wavemul}\ns_add_u32 s46, s46, s47\nv_mov_b32 v2, s46")
            A(f"v_mov_b32 v4, s{80+2*k}\nv_mov_b32 v5, s{81+2*k}")
            A("buffer_store_dwordx2 v[4:5], v2, s[40:43], 0 offen")
            A("s_nop 1")
        A("s_mov_b64 exec, -1")

    def lds_wait4(off, k, va, vz):
        l = A.newlabel("LW"); d = A.newlabel("LWD")
        A.label(l)
        A(f"ds_read_b128 {vr(va)}, v{vz} offset:{off}")
        A("s_waitcnt lgkmcnt(0)")
        A(f"v_min_u32 v{va}, v{va}, v{va+1}\nv_min3_u32 v{va}, v{va}, v{va+2}, v{va+3}\ns_nop 0")
        A(f"v_readfirstlane_b32 s46, v{va}\ns_nop 0")
        A(f"s_cmp_ge_u32 s46, {k}\ns_cbranch_scc1 {d}\ns_sleep 1\ns_branch {l}")
        A.label(d)
    def lds_wait1(vaddr, off, k, va):
        l = A.newlabel("LW"); d = A.newlabel("LWD")
        A.label(l)
        A(f"ds_read_b32 v{va}, v{vaddr} offset:{off}")
        A("s_waitcnt lgkmcnt(0)")
        A(f"v_readfirstlane_b32 s46, v{va}\ns_nop 0")
        A(f"s_cmp_ge_u32 s46, {k}\ns_cbranch_scc1 {d}\ns_sleep 1\ns_branch {l}")
        A.label(d)
    def perms_pair(L, T, a):
        for jj in range(4):
            lo = L + 4*(2*a) + jj; hi = L + 4*(2*a+1) + jj
            A(f"v_perm_b32 v{T + 4*(2*jj) + a}, v{hi}, v{lo}, s{S_SELLO}")
            A(f"v_perm_b32 v{T + 4*(2*jj+1) + a}, v{hi}, v{lo}, s{S_SELHI}")
    def perms(L, T):
        for a in range(4): perms_pair(L, T, a)
    def mfma8(acc, Areg, T, first):
        for c in range(8):
            cin = "0" if first else vr(acc + 4*c)
            A(f"v_mfma_f32_16x16x32_bf16 {vr(acc+4*c)}, {vr(Areg)}, {vr(T+4*c)}, {cin}")
    def extract8(acc, res, tmp, smask):
        for c in range(8):
            A(f"v_cndmask_b32 v{tmp+c}, v{acc+4*c+2}, v{acc+4*c+1}, s[{smask}:{smask+1}]")
            A(f"v_cndmask_b32 v{res+c}, v{acc+4*c+0}, v{acc+4*c+3}, s[{smask}:{smask+1}]")
        for c in range(8):
            A(f"v_add_f32_dpp v{res+c}, v{tmp+c}, v{res+c} row_ror:8 row_mask:0xf bank_mask:0xf")
    def tag(regs, vmask):
        for r in regs: A(f"v_and_or_b32 v{r}, v{r}, v{vmask}, s{S_TAG}")
    def msad(regs, vacc):
        for n, r in enumerate(regs):
            A(f"v_msad_u8 v{vacc}, v{r}, s{S_TAG}, {'0' if n == 0 else 'v'+str(vacc)}")
    def poll_tail(vacc, loop, sleep):
        d = A.newlabel("PD")
        A(f"v_cmp_ne_u32 vcc, 0, v{vacc}")
        A(f"s_add_u32 s{S_IT}, s{S_IT}, 1")
        A(f"s_cmp_ge_u32 s{S_IT}, {POLL_MAX}\ns_cbranch_scc1 {d}")
        A(f"s_cmp_eq_u64 vcc, 0\ns_cbranch_scc1 {d}")
        if sleep: A(f"s_sleep {sleep}")
        A(f"s_branch {loop}")
        A.label(d)
    def prog_poll(groups, vaddr, ssoff, macc, sleep):
        for (m, lds_, sm) in groups: A(f"s_mov_b64 s[{m}:{m+1}], -1")
        lp = A.newlabel("PP"); dn = A.newlabel("PPD")
        A.label(lp)
        for (m, lds_, sm) in groups:
            sk = A.newlabel("PS")
            A(f"s_mov_b64 exec, s[{m}:{m+1}]\ns_cbranch_execz {sk}")
            for (r, imm) in lds_: A(f"buffer_load_dwordx4 {vr(r)}, v{vaddr}, s[40:43], s{ssoff} offen offset:{imm} sc1")
            A.label(sk)
        A("s_waitcnt vmcnt(0)")
        for (m, lds_, sm) in groups:
            sk = A.newlabel("PS")
            A(f"s_mov_b64 exec, s[{m}:{m+1}]\ns_cbranch_execz {sk}")
            regs = [r + k for (r, imm) in lds_ for k in range(4)]
            msad(regs, macc)
            A(f"v_cmp_eq_u32 vcc, 0, v{macc}")
            A(f"s_andn2_b64 s[{m}:{m+1}], s[{m}:{m+1}], vcc\ns_mov_b64 exec, vcc")
            for n, r in enumerate(regs): A(f"v_add_f32 v{sm+n}, v{sm+n}, v{r}")
            A.label(sk)
        m0 = groups[0][0]
        A(f"s_mov_b64 s[48:49], s[{m0}:{m0+1}]")
        for (m, lds_, sm) in groups[1:]: A(f"s_or_b64 s[48:49], s[48:49], s[{m}:{m+1}]")
        A(f"s_add_u32 s{S_IT}, s{S_IT}, 1\ns_cmp_ge_u32 s{S_IT}, {POLL_MAX}\ns_cbranch_scc1 {dn}")
        A(f"s_cmp_eq_u64 s[48:49], 0\ns_cbranch_scc1 {dn}")
        if sleep: A(f"s_sleep {sleep}")
        A(f"s_branch {lp}")
        A.label(dn)
        A("s_mov_b64 exec, -1")
    def early_store():
        if est == 1: return
        if est == 2:
            A("v_lshlrev_b32 v36, 4, v1\nv_sub_u32 v3, v3, v36")
            A(f"buffer_store_dwordx4 {vr(20)}, v3, s[40:43], s46 offen sc1")
            A(f"buffer_store_dwordx4 {vr(24)}, v3, s[40:43], s46 offen offset:128 sc1")
            return
        if est == 4:
            A("s_mov_b64 exec, 1")
            A(f"buffer_store_dwordx4 {vr(20)}, v3, s[40:43], s46 offen sc1")
            A("s_mov_b64 exec, -1")
            return
        if est == 5:
            A("s_mov_b64 exec, 0xff")
            A("v_lshlrev_b32 v36, 4, v1\nv_sub_u32 v3, v3, v36")
            A(f"buffer_store_dwordx4 {vr(20)}, v3, s[40:43], s46 offen sc1")
            A("s_mov_b64 exec, -1")
            return
        if est == 6:
            A("v_lshlrev_b32 v36, 4, v1\nv_sub_u32 v3, v3, v36")
            A(f"buffer_store_dwordx4 {vr(20)}, v3, s[40:43], s46 offen sc1")
            return
        if est == 7:
            A("v_lshlrev_b32 v36, 4, v1\nv_sub_u32 v3, v3, v36")
            A(f"buffer_store_dwordx4 {vr(20)}, v3, s[40:43], s46 offen")
            A(f"buffer_store_dwordx4 {vr(24)}, v3, s[40:43], s46 offen offset:128")
            return
        if est == 8:
            A("v_lshlrev_b32 v36, 4, v1\nv_sub_u32 v3, v3, v36")
            A(f"buffer_store_dwordx4 {vr(20)}, v3, s[40:43], s46 offen sc0 sc1")
            A(f"buffer_store_dwordx4 {vr(24)}, v3, s[40:43], s46 offen offset:128 sc0 sc1")
            return
        if est == 9:
            A("v_lshlrev_b32 v36, 4, v1\nv_sub_u32 v3, v3, v36")
            A(f"buffer_store_dwordx4 {vr(20)}, v3, s[40:43], s46 offen sc1 nt")
            A(f"buffer_store_dwordx4 {vr(24)}, v3, s[40:43], s46 offen offset:128 sc1 nt")
            return
        pol = " sc1" if est == 0 else ""
        A(f"buffer_store_dwordx4 {vr(20)}, v3, s[40:43], s46 offen{pol}")
        A(f"buffer_store_dwordx4 {vr(24)}, v3, s[40:43], s46 offen offset:16{pol}")
    def load_tag():
        A(f"s_load_dword s{S_TAG}, s[26:27], {WOFF}")
    def make_tag():
        A(f"s_and_b32 s{S_TAG}, s{S_TAG}, 0xff\ns_cmp_eq_u32 s{S_TAG}, 0xff\ns_cselect_b32 s{S_TAG}, 0, s{S_TAG}\ns_add_u32 s{S_TAG}, s{S_TAG}, 1")
    def allreduce2(a0, a1, t0, t1, op):
        A(f"v_mov_b32 v{t0}, v{a0}\nv_mov_b32 v{t1}, v{a1}\ns_nop 1")
        A(f"v_permlane32_swap_b32 v{t0}, v{t1}\ns_nop 1")
        A(f"{op} v{t0}, v{t0}, v{t1}\ns_nop 0\nv_mov_b32 v{t1}, v{t0}\ns_nop 1")
        A(f"v_permlane16_swap_b32 v{t0}, v{t1}\ns_nop 1")
        A(f"{op} v{t0}, v{t0}, v{t1}\ns_nop 1")
        for r in (1, 2, 4, 8):
            A(f"{op}_dpp v{t0}, v{t0}, v{t0} row_ror:{r} row_mask:0xf bank_mask:0xf\ns_nop 1")

    hdr = []
    hdr.append(f"; @launch grid=(256,1,1) block=(512,1,1) lds={LDS_BYTES}")
    hdr.append('.amdgcn_target "amdgcn-amd-amdhsa--gfx950"')
    hdr.append(".text"); hdr.append(f".globl {NAME}_kernel"); hdr.append(".p2align 8"); hdr.append(f".type {NAME}_kernel,@function")
    hdr.append(f"{NAME}_kernel:")

    A("s_cmp_ge_u32 s2, 256\ns_cbranch_scc1 L_END")
    stamp(0)
    if delay:
        A("s_memrealtime s[60:61]\ns_waitcnt lgkmcnt(0)")
        A.label("L_DLY")
        A(f"s_memrealtime s[62:63]\ns_waitcnt lgkmcnt(0)\ns_sub_u32 s64, s62, s60\ns_cmp_lt_u32 s64, {delay}\ns_cbranch_scc1 L_DLY")
    if diag:
        for k in range(82, 100): A(f"s_mov_b32 s{k}, 0")
    A("s_load_dwordx16 s[4:19], s[0:1], 0")
    A("s_load_dwordx8 s[20:27], s[0:1], 64")
    A("v_lshrrev_b32 v1, 6, v0\nv_and_b32 v0, 63, v0")
    A("s_and_b32 s28, s2, 7")
    A("v_readfirstlane_b32 s3, v1")
    A("s_bfe_u32 s29, s2, 0x30003")
    A("s_lshr_b32 s30, s2, 6")
    if mapm == 1:
        A("s_mov_b32 s46, s28\ns_mov_b32 s28, s29\ns_mov_b32 s29, s46")
    if mapm == 2:
        A("s_add_u32 s28, s28, 2\ns_and_b32 s28, s28, 7")
    if mapm == 3:
        A("s_xor_b32 s29, s29, 4")
    A("s_lshl_b32 s31, s30, 3\ns_add_u32 s31, s31, s28")
    A(f"s_mov_b32 s{S_SELLO}, 0x05040100\ns_mov_b32 s{S_SELHI}, 0x07060302\ns_mov_b32 s{S_IT}, 0")
    A("s_mov_b32 s56, 0xff00ff00\ns_mov_b32 s57, 0xff00ff00")
    A("s_cmp_ge_u32 s3, 4\ns_cbranch_scc1 L_X")

    LB = [64, 96, 128, 160]; SP = 192
    TB = [SP, LB[0], LB[1], LB[2]]
    ACC = 12; AV = 20
    A("s_lshl_b32 s44, s29, 3\ns_add_u32 s44, s44, s28\ns_lshl_b32 s44, s44, 21\ns_add_u32 s44, s44, 0x180000")
    A("s_lshl_b32 s45, s30, 17\ns_add_u32 s44, s44, s45")
    A("s_lshl_b32 s58, s3, 15")
    A("s_add_u32 s59, s44, s58")
    A(f"s_add_u32 s58, s58, {L_K}")
    if rotm == 0:
        A("s_lshr_b32 s45, s2, 3\ns_add_u32 s45, s45, s2\ns_lshl_b32 s46, s3, 3\ns_add_u32 s45, s45, s46")
    elif rotm == 1:
        A("s_lshr_b32 s45, s2, 3\ns_lshl_b32 s46, s3, 3\ns_add_u32 s45, s45, s46")
    elif rotm == 2:
        A("s_lshl_b32 s45, s2, 2\ns_bfe_u32 s46, s2, 0x20003\ns_add_u32 s45, s45, s46\ns_lshl_b32 s46, s3, 3\ns_add_u32 s45, s45, s46")
    elif rotm == 3:
        A("s_lshl_b32 s45, s2, 2\ns_add_u32 s45, s45, s3\ns_mul_i32 s45, s45, 0x9e3779b1\ns_lshr_b32 s45, s45, 27")
    A("v_lshrrev_b32 v1, 5, v0\nv_and_b32 v2, 31, v0\nv_xor_b32 v2, v2, v1\nv_lshlrev_b32 v2, 4, v2\nv_lshl_add_u32 v2, v1, 9, v2")
    A("v_lshrrev_b32 v1, 3, v0\nv_lshlrev_b32 v4, 12, v1\nv_and_b32 v1, 7, v0\nv_lshl_add_u32 v4, v1, 4, v4")
    A("s_lshl_b32 s46, s3, 7\nv_add_u32 v4, s46, v4")
    A("v_mov_b32 v10, 0")
    A("s_lshl_b32 s46, s3, 2\nv_mov_b32 v11, s46")
    A("s_waitcnt lgkmcnt(0)")
    A.srd(32, 6, 0x8000000)
    nissued = 0
    def throttle():
        if nissued >= D: A(f"s_waitcnt vmcnt({D-1})")
    for u in range(32):
        A(f"s_add_u32 s46, s45, {u}\ns_and_b32 s46, s46, 31\ns_lshl_b32 s47, s46, 10\ns_add_u32 s48, s47, s59\ns_add_u32 m0, s47, s58")
        A("s_lshl_b32 s49, s46, 5\ns_and_b32 s49, s49, 0xe0\nv_xor_b32 v3, s49, v2")
        A(f"buffer_load_dwordx4 v3, s[32:35], s48 offen{kvpol} lds")
        nissued += 1
        if u == min(D, 4) - 1:
            A.srd(36, 8, 0x8000000); A.srd(40, 26, 0x20000000)
            load_tag()
            A("s_barrier")
        throttle()
        if nissued - (D - 1) == 16:
            A(f"v_mov_b32 v9, 1\nds_write_b32 v11, v9 offset:{L_F}")
    done_pairs = 0
    def v_progress(complete):
        nonlocal done_pairs
        while (done_pairs + 1) * 2 <= complete:
            kb, a = divmod(done_pairs, 4)
            perms_pair(LB[kb], TB[kb], a)
            done_pairs += 1
    for n in range(32):
        kb, e = divmod(n, 8)
        if e == 0: A(f"s_add_u32 s48, s44, {kb*32768}")
        A(f"buffer_load_dwordx4 {vr(LB[kb] + 4*e)}, v4, s[36:39], s48 offen offset:{e*512}{kvpol}")
        nissued += 1
        throttle()
        comp = nissued - (D - 1)
        if comp == 32:
            A(f"v_mov_b32 v9, 2\nds_write_b32 v11, v9 offset:{L_F}")
            stamp(1)
        v_progress(comp - 32)
        if n == VT - 1:
            assert comp > 32
            A(f"v_mov_b32 v9, 3\nds_write_b32 v11, v9 offset:{L_F}")
    stamp(2)
    A("s_setprio 3")
    A("s_waitcnt lgkmcnt(0)")
    make_tag()
    A("v_and_b32 v1, 15, v0\nv_lshrrev_b32 v2, 4, v0")
    A("v_bfe_u32 v3, v1, 1, 1\nv_lshlrev_b32 v3, 9, v3")
    A("v_lshl_add_u32 v3, v2, 5, v3\nv_and_b32 v9, 1, v1\nv_lshl_add_u32 v3, v9, 4, v3")
    A(f"v_add_u32 v3, {L_PB}, v3\nv_mov_b32 v9, {L_ZERO}\nv_lshrrev_b32 v1, 2, v1")
    for q in range(4):
        A(f"v_cmp_eq_u32 vcc, {q}, v1\ns_nop 1\nv_cndmask_b32 v{5+q}, v9, v3, vcc")
    A("v_bfe_u32 v1, v0, 3, 1\nv_lshlrev_b32 v1, 15, v1")
    A("v_and_b32 v3, 7, v0\nv_lshl_add_u32 v1, v3, 5, v1\nv_lshl_add_u32 v1, v2, 3, v1")
    A("s_lshl_b32 s46, s28, 2\ns_lshr_b32 s47, s3, 1\ns_add_u32 s46, s46, s47\ns_lshl_b32 s46, s46, 14")
    A("s_lshl_b32 s47, s29, 11\ns_add_u32 s46, s46, s47\ns_lshl_b32 s47, s30, 9\ns_add_u32 s46, s46, s47")
    A(f"s_and_b32 s47, s3, 1\ns_lshl_b32 s47, s47, 8\ns_add_u32 s46, s46, s47\ns_add_u32 s60, s46, {OP}")
    A("v_mov_b32 v36, 0xffffff00")
    A(f"v_bfe_u32 v37, v0, 3, 1\nv_lshlrev_b32 v37, 2, v37")
    if not so: lds_wait4(L_XQ, 3, 40, 10)
    def pv(kb, first):
        for q in range(4): A(f"ds_read_b128 {vr(AV+4*q)}, v{5+q} offset:{kb*128}")
        for c in range(8):
            if c < 4: A(f"s_waitcnt lgkmcnt({3-c})")
            a = ACC + 4*(c >> 2)
            cin = "0" if (first and (c & 3) == 0) else vr(a)
            A(f"v_mfma_f32_16x16x32_bf16 {vr(a)}, {vr(AV+4*(c&3))}, {vr(TB[kb]+4*c)}, {cin}")
    assert D <= 9
    for kb in range(3):
        assert done_pairs >= 4*(kb+1)
        pv(kb, kb == 0)
    if not so: lds_wait1(10, L_SC, 1, 40)
    A(f"ds_read_b32 v38, v37 offset:{L_SC+8}")
    for w in range(D - 2, -1, -1):
        A(f"s_waitcnt vmcnt({w})")
        v_progress(32 - w)
    stamp(3)
    A(f"v_mov_b32 v9, 4\nds_write_b32 v11, v9 offset:{L_F}")
    pv(3, False)
    A("s_nop 7")
    for a in range(2):
        b_ = ACC + 4*a
        A(f"v_cndmask_b32 v{42+a}, v{b_+2}, v{b_+1}, s[56:57]")
        A(f"v_cndmask_b32 v{40+a}, v{b_+0}, v{b_+3}, s[56:57]")
    A("s_nop 0")
    for a in range(2):
        A(f"v_add_f32_dpp v{40+a}, v{42+a}, v{40+a} row_ror:8 row_mask:0xf bank_mask:0xf")
    A("v_mul_f32 v40, v40, v38\nv_mul_f32 v41, v41, v38")
    tag([40, 41], 36)
    A("buffer_store_dwordx2 v[40:41], v1, s[40:43], s60 offen sc1")
    stamp(4)
    if diag:
        stamp_store(0, [0, 1, 2, 3, 4], wavemul=5)
    A("s_endpgm")

    A.label("L_X")
    if so and abl == 0: A("s_barrier\ns_endpgm")
    A("s_setprio 3")
    A("s_sub_u32 s61, s3, 4")
    A("v_and_b32 v1, 7, v0\nv_lshrrev_b32 v2, 3, v0")
    A("v_and_b32 v5, 15, v0\nv_lshrrev_b32 v6, 4, v0")
    A("v_and_b32 v7, 1, v5\nv_lshl_add_u32 v7, v6, 1, v7")
    A("v_lshrrev_b32 v16, 1, v5")
    A("v_mov_b32 v17, 0\nv_mov_b32 v18, 0xffffff00")
    A(f"v_mov_b32 v19, {OOB}")
    A("v_mul_u32_u24 v4, 896, v16\nv_lshl_add_u32 v4, v7, 4, v4")
    A("v_cmp_eq_u32 vcc, 7, v7\ns_nop 1\nv_cndmask_b32 v4, v4, v19, vcc")
    A("v_cmp_eq_u32 s[62:63], 7, v2")
    A("s_waitcnt lgkmcnt(0)")
    A.srd(40, 26, 0x20000000); A.srd(32, 4, 7168)
    load_tag()
    XL = [64, 96, 128]; XT = [160, 192]; XACC = 224; XA = [8, 12]; XRES = 20; XTMP = 28
    A("s_cmp_eq_u32 s3, 5\ns_cbranch_scc1 L_X5\ns_cmp_eq_u32 s3, 6\ns_cbranch_scc1 L_X6\ns_cmp_eq_u32 s3, 7\ns_cbranch_scc1 L_X7")
    A.srd(36, 10, 448*4096*2)
    A("v_lshlrev_b32 v3, 16, v2\nv_lshl_add_u32 v3, v1, 4, v3\nv_cndmask_b32 v3, v3, v19, s[62:63]")
    A(f"s_mul_i32 s46, s30, {112*8192}\ns_lshl_b32 s47, s28, 3\ns_add_u32 s47, s47, s29\ns_lshl_b32 s47, s47, 7\ns_add_u32 s46, s46, s47")
    A("s_mul_i32 s47, s30, 224")
    for blk in range(2):
        for e in range(8):
            A(f"s_add_u32 s48, s46, {(56*blk+e)*8192}")
            A(f"buffer_load_dwordx4 {vr(XL[blk]+4*e)}, v3, s[36:39], s48 offen{wpol}")
        A(f"buffer_load_dwordx4 {vr(XA[blk])}, v4, s[32:35], s47 offen offset:{112*blk}")
    A("s_barrier")
    A("v_lshlrev_b32 v3, 16, v2\nv_lshl_add_u32 v3, v1, 5, v3")
    A("s_lshl_b32 s46, s28, 1\ns_lshr_b32 s47, s29, 2\ns_add_u32 s46, s46, s47\ns_lshl_b32 s46, s46, 12")
    A(f"s_lshl_b32 s47, s30, 10\ns_add_u32 s46, s46, s47\ns_and_b32 s47, s29, 3\ns_lshl_b32 s47, s47, 8\ns_add_u32 s46, s46, s47\ns_add_u32 s46, s46, {QP}")
    A("s_waitcnt vmcnt(9)")
    perms(XL[0], XT[0]); A("s_nop 1"); mfma8(XACC, XA[0], XT[0], True)
    A("s_waitcnt vmcnt(0)")
    perms(XL[1], XT[1]); A("s_nop 1"); mfma8(XACC, XA[1], XT[1], False)
    A("s_waitcnt lgkmcnt(0)"); make_tag(); A("s_nop 3")
    extract8(XACC, XRES, XTMP, 56)
    tag(range(XRES, XRES+8), 18)
    early_store()
    stamp(1)
    A("s_branch L_XMID")
    A.label("L_X5")
    A.srd(36, 16, 448*1792*2)
    A(f"v_mul_u32_u24 v3, {8*3584}, v2\nv_lshl_add_u32 v3, v1, 4, v3\nv_cndmask_b32 v3, v3, v19, s[62:63]")
    A(f"s_mul_i32 s46, s29, {56*3584}\ns_lshl_b32 s47, s31, 7\ns_add_u32 s46, s46, s47")
    A("s_mul_i32 s47, s29, 112")
    A("s_cmp_ge_u32 s31, 28\ns_cbranch_scc1 L_X5S")
    for e in range(8):
        A(f"s_add_u32 s48, s46, {e*3584}")
        A(f"buffer_load_dwordx4 {vr(XL[0]+4*e)}, v3, s[36:39], s48 offen{wpol}")
    A(f"buffer_load_dwordx4 {vr(XA[0])}, v4, s[32:35], s47 offen")
    A("s_barrier")
    A("v_lshlrev_b32 v3, 11, v2\nv_lshl_add_u32 v3, v1, 5, v3")
    A(f"s_lshl_b32 s46, s31, 14\ns_lshl_b32 s47, s29, 8\ns_add_u32 s46, s46, s47\ns_add_u32 s46, s46, {HP}")
    A("s_waitcnt vmcnt(0)")
    perms(XL[0], XT[0]); A("s_nop 1"); mfma8(XACC, XA[0], XT[0], True)
    A("s_waitcnt lgkmcnt(0)"); make_tag(); A("s_nop 3")
    extract8(XACC, XRES, XTMP, 56)
    tag(range(XRES, XRES+8), 18)
    early_store()
    A("s_branch L_XMID")
    A.label("L_X5S")
    A("s_barrier\ns_waitcnt lgkmcnt(0)"); make_tag()
    A("s_branch L_XMID")
    A.label("L_X6")
    A.srd(36, 20, 896)
    A("v_lshlrev_b32 v3, 4, v0\nv_cmp_gt_u32 vcc, 56, v0\ns_nop 1\nv_cndmask_b32 v3, v19, v3, vcc")
    A("s_mul_i32 s47, s29, 896")
    A("buffer_load_dwordx4 v[8:11], v3, s[32:35], s47 offen")
    A("buffer_load_dwordx4 v[12:15], v3, s[36:39], 0 offen")
    A("s_barrier")
    A("s_waitcnt vmcnt(0)")
    A("v_mov_b32 v20, 0")
    for k in range(4):
        A(f"v_lshlrev_b32 v21, 16, v{8+k}\nv_and_b32 v22, 0xffff0000, v{8+k}\nv_lshlrev_b32 v23, 16, v{12+k}\nv_and_b32 v24, 0xffff0000, v{12+k}")
        A("v_mul_f32 v21, v21, v23\nv_mul_f32 v22, v22, v24\nv_cvt_pk_bf16_f32 v21, v21, v22")
        A("v_lshlrev_b32 v22, 16, v21\nv_and_b32 v21, 0xffff0000, v21\nv_add_f32 v20, v20, v22\nv_add_f32 v20, v20, v21")
    allreduce2(20, 20, 21, 22, "v_add_f32")
    A("v_cvt_pk_bf16_f32 v21, v21, v21\nv_lshlrev_b32 v21, 16, v21")
    A("v_mul_f32 v21, 0xbfb8aa3b, v21\nv_exp_f32 v21, v21\ns_nop 0\nv_add_f32 v21, 1.0, v21\nv_rcp_f32 v21, v21\ns_nop 0")
    A("v_cvt_pk_bf16_f32 v21, v21, v21\nv_lshlrev_b32 v22, 16, v21")
    A("v_sub_f32 v23, 1.0, v22\nv_cvt_pk_bf16_f32 v23, v23, v23\nv_lshlrev_b32 v23, 16, v23")
    A(f"ds_write_b64 v17, v[22:23] offset:{L_G}")
    A("s_waitcnt lgkmcnt(0)"); make_tag()
    A("s_branch L_XMID")
    A.label("L_X7")
    A("v_lshlrev_b32 v3, 4, v0\nv_mov_b32 v8, 0\nv_mov_b32 v9, 0\nv_mov_b32 v10, 0\nv_mov_b32 v11, 0")
    A(f"ds_write_b128 v3, v[8:11] offset:{L_ZERO}")
    A("s_waitcnt lgkmcnt(0)\ns_barrier")
    make_tag()

    A.label("L_XMID")
    if abl == 1: A("s_endpgm")
    A("s_lshl_b32 s46, s61, 2\nv_mov_b32 v36, s46")
    A("s_lshl_b32 s46, s29, 4\ns_lshl_b32 s47, s28, 1\ns_add_u32 s46, s46, s47\ns_lshr_b32 s47, s61, 1\ns_add_u32 s46, s46, s47\ns_lshl_b32 s46, s46, 12")
    A(f"s_and_b32 s47, s61, 1\ns_lshl_b32 s47, s47, 9\ns_add_u32 s46, s46, s47\ns_add_u32 s60, s46, {QP}")
    A("v_lshlrev_b32 v3, 3, v0")
    A(f"s_lshl_b32 s46, s61, 8\ns_add_u32 s46, s46, {L_QB}\nv_lshlrev_b32 v37, 2, v0\nv_add_u32 v37, s46, v37")
    if qgate: lds_wait1(36, L_F, qgate, 40)
    stamp(2)
    lp = A.newlabel("QPOLL"); A.label(lp)
    for r in range(4): A(f"buffer_load_dwordx2 v[{40+2*r}:{41+2*r}], v3, s[40:43], s60 offen offset:{r*1024} sc1")
    A("s_waitcnt vmcnt(0)")
    msad(range(40, 48), 38)
    poll_tail(38, lp, sleep_q)
    A("v_add_f32 v40, v40, v42\nv_add_f32 v41, v41, v43\nv_add_f32 v44, v44, v46\nv_add_f32 v45, v45, v47\nv_add_f32 v40, v40, v44\nv_add_f32 v41, v41, v45")
    A("v_cvt_pk_bf16_f32 v40, v40, v41\nds_write_b32 v37, v40")
    A(f"v_mov_b32 v38, 1\ns_waitcnt lgkmcnt(0)\nds_write_b32 v36, v38 offset:{L_XQ}")
    stamp(3)
    if abl == 2: A("s_endpgm")
    A("v_xor_b32 v39, v6, v5\nv_lshlrev_b32 v39, 4, v39\nv_lshl_add_u32 v39, v5, 9, v39\ns_lshl_b32 s46, s61, 15\ns_add_u32 s46, s46, 8192\nv_add_u32 v48, s46, v39")
    A("v_xor_b32 v49, 64, v48\nv_xor_b32 v50, 0x80, v48\nv_xor_b32 v51, 0xc0, v48")
    A(f"v_and_b32 v39, 1, v5\nv_lshlrev_b32 v39, 9, v39\nv_lshl_add_u32 v39, v6, 4, v39")
    lds_wait4(L_XQ, 1, 40, 17)
    QA = 64; KB_ = 96; SACC = 224
    for t in range(8): A(f"ds_read_b128 {vr(QA+4*t)}, v39 offset:{L_QB + 64*t}")
    lds_wait1(36, L_F, 2, 40)
    stamp(4)
    order = [(tau, t) for t in range(8) for tau in range(4)]
    def kread(n):
        tau, t = order[n]
        A(f"ds_read_b128 {vr(KB_+4*n)}, v{48+(t&3)} offset:{(t>>2)*256 + tau*8192}")
    INF = 8
    for n in range(INF): kread(n)
    for n in range(32):
        tau, t = order[n]
        rem = min(INF - 1, 31 - n)
        A(f"s_waitcnt lgkmcnt({rem})")
        cin = "0" if t == 0 else vr(SACC+4*tau)
        A(f"v_mfma_f32_16x16x32_bf16 {vr(SACC+4*tau)}, {vr(QA+4*t)}, {vr(KB_+4*n)}, {cin}")
        if n + INF < 32: kread(n + INF)
    A("v_cmp_eq_u32 s[64:65], 1, v6\nv_cmp_eq_u32 s[66:67], 2, v6\nv_cmp_eq_u32 s[68:69], 3, v6\ns_nop 5")
    for h in range(2):
        A(f"v_cndmask_b32 v{40+h}, v{SACC+h}, v{SACC+4+h}, s[64:65]")
        A(f"v_cndmask_b32 v{40+h}, v{40+h}, v{SACC+8+h}, s[66:67]")
        A(f"v_cndmask_b32 v{40+h}, v{40+h}, v{SACC+12+h}, s[68:69]")
    allreduce2(40, 41, 42, 43, "v_max_f32")
    A(f"v_lshrrev_b32 v44, 5, v0\nv_lshlrev_b32 v44, 2, v44\ns_lshl_b32 s46, s61, 3\nv_add_u32 v44, s46, v44")
    A(f"ds_write_b32 v44, v42 offset:{L_M}")
    A(f"v_mov_b32 v38, 2\ns_waitcnt lgkmcnt(0)\nds_write_b32 v36, v38 offset:{L_XQ}")
    lds_wait4(L_XQ, 2, 52, 17)
    A(f"ds_read_b128 v[52:55], v17 offset:{L_M}\nds_read_b128 v[56:59], v17 offset:{L_M+16}\ns_waitcnt lgkmcnt(0)")
    A("v_max_f32 v52, v52, v54\nv_max3_f32 v52, v52, v56, v58\nv_max_f32 v53, v53, v55\nv_max3_f32 v53, v53, v57, v59")
    A("s_mov_b32 s47, 0x3db8aa3b")
    A("v_sub_f32 v40, v40, v52\nv_sub_f32 v41, v41, v53\nv_mul_f32 v40, s47, v40\nv_mul_f32 v41, s47, v41\nv_exp_f32 v40, v40\nv_exp_f32 v41, v41\ns_nop 0")
    A(f"v_cvt_pk_bf16_f32 v45, v40, v41\ns_lshl_b32 s46, s61, 7\ns_add_u32 s46, s46, {L_PB}\nv_lshlrev_b32 v46, 1, v0\nv_add_u32 v46, s46, v46")
    A("ds_write_b16 v46, v45\nds_write_b16_d16_hi v46, v45 offset:512")
    allreduce2(40, 41, 42, 43, "v_add_f32")
    A(f"ds_write_b32 v44, v42 offset:{L_L}")
    A(f"v_mov_b32 v38, 3\ns_waitcnt lgkmcnt(0)\nds_write_b32 v36, v38 offset:{L_XQ}")
    stamp(5)
    if abl == 3: A("s_endpgm")
    if abl == 4: A("s_cmp_eq_u32 s3, 4\ns_cbranch_scc1 L_END\ns_cmp_eq_u32 s3, 7\ns_cbranch_scc1 L_END")
    A("s_cmp_eq_u32 s3, 5\ns_cbranch_scc1 L_Y5\ns_cmp_eq_u32 s3, 6\ns_cbranch_scc1 L_Y6\ns_cmp_eq_u32 s3, 7\ns_cbranch_scc1 L_Y7")

    A("s_cmp_eq_u32 s29, 7\ns_cbranch_scc1 L_Y4END")
    A.srd(36, 12, 4096*448*2)
    A("v_mul_u32_u24 v3, 7168, v2\nv_lshl_add_u32 v3, v1, 4, v3")
    A("s_lshl_b32 s58, s28, 2\ns_add_u32 s58, s58, s30")
    A(f"s_mul_i32 s46, s58, {128*896}\ns_lshl_b32 s47, s29, 7\ns_add_u32 s59, s46, s47")
    A("v_lshlrev_b32 v4, 11, v16\nv_lshl_add_u32 v4, v7, 5, v4")
    A(f"s_lshl_b32 s60, s58, 14\ns_add_u32 s60, s60, {OP}")
    A(f"v_mul_u32_u24 v36, {28*2048}, v2\nv_lshrrev_b32 v37, 1, v1\nv_lshl_add_u32 v36, v37, 11, v36\nv_and_b32 v37, 1, v1\nv_lshl_add_u32 v36, v37, 5, v36")
    A(f"s_lshl_b32 s46, s29, 13\ns_lshl_b32 s47, s58, 6\ns_add_u32 s46, s46, s47\ns_add_u32 s62, s46, {FP}")
    A(f"s_mul_i32 s46, s28, 28\ns_lshl_b32 s47, s29, 2\ns_add_u32 s46, s46, s47\ns_add_u32 s46, s46, s30\ns_lshl_b32 s63, s46, 11\ns_add_u32 s63, s63, {FP}")
    A("v_lshlrev_b32 v37, 4, v0")
    A("v_lshlrev_b32 v38, 5, v0")
    lds_wait4(L_F, 3, 40, 17)
    WL = [64, 96]; WT = [128, 64]; G0 = 160
    for blk in range(2):
        A(f"s_add_u32 s46, s59, {blk*64*896}\ns_add_u32 s47, s46, 3584")
        for e in range(8):
            A(f"buffer_load_dwordx4 {vr(WL[blk]+4*e)}, v3, s[36:39], s{46 + (e&1)} offen offset:{(e>>1)*896}{wpol}")
    A("s_waitcnt vmcnt(8)")
    perms(WL[0], WT[0])
    A("s_waitcnt vmcnt(0)")
    perms(WL[1], WT[1])
    stamp(6)
    SUM = 96
    for k in range(16): A(f"v_mov_b32 v{SUM+k}, 0")
    groups = []
    for blk in range(2):
        for s_ in range(4):
            k = blk*4 + s_
            groups.append((64 + 2*k, [(G0 + k*8 + hh*4, s_*512 + blk*256 + hh*16) for hh in range(2)], SUM + 8*blk))
    lds_wait4(L_F, 4, 40, 17)
    prog_poll(groups, 4, 60, 39, sleep_o)
    stamp(7)
    for blk in range(2):
        g = SUM + blk*8
        for k in range(4): A(f"v_cvt_pk_bf16_f32 v{XA[blk]+k}, v{g+2*k}, v{g+2*k+1}")
    A("s_nop 1")
    for blk in range(2):
        mfma8(XACC, XA[blk], WT[blk], blk == 0)
    lds_wait1(17, L_W2F, 1, 40)
    A(f"ds_read_b128 v[40:43], v38 offset:{L_W2R}\nds_read_b128 v[44:47], v38 offset:{L_W2R+16}")
    A("s_nop 4")
    extract8(XACC, XRES, XTMP, 56)
    A("s_waitcnt lgkmcnt(0)")
    for k in range(8): A(f"v_add_f32 v{XRES+k}, v{XRES+k}, v{40+k}")
    tag(range(XRES, XRES+8), 18)
    A(f"buffer_store_dwordx4 {vr(XRES)}, v36, s[40:43], s62 offen sc1")
    A(f"buffer_store_dwordx4 {vr(XRES+4)}, v36, s[40:43], s62 offen offset:16 sc1")
    stamp(8)
    A.srd(36, 22, 7168)
    A("v_and_b32 v3, 3, v0\nv_lshlrev_b32 v3, 2, v3\nv_and_b32 v4, 1, v6\nv_lshl_add_u32 v3, v4, 1, v3\nv_lshrrev_b32 v4, 1, v6\nv_add_u32 v3, v3, v4\nv_lshlrev_b32 v3, 1, v3")
    A("v_cmp_gt_u32 vcc, 4, v5\ns_nop 1\nv_cndmask_b32 v3, v19, v3, vcc")
    A("s_mul_i32 s46, s28, 896\ns_lshl_b32 s47, s29, 7\ns_add_u32 s46, s46, s47\ns_lshl_b32 s47, s30, 5\ns_add_u32 s59, s46, s47")
    for k in range(4): A(f"v_mov_b32 v{40+k}, 0")
    prog_poll([(64, [(44, 0)], 40), (66, [(48, 1024)], 40)], 37, 63, 39, sleep_f)
    A("s_nop 1\nv_permlane32_swap_b32 v40, v41\nv_permlane32_swap_b32 v42, v43\ns_nop 1")
    A("v_add_f32 v40, v40, v41\nv_add_f32 v42, v42, v43\ns_nop 1\nv_permlane16_swap_b32 v40, v42\ns_nop 1\nv_add_f32 v40, v40, v42\ns_nop 1")
    A("v_add_f32_dpp v40, v40, v40 row_ror:4 row_mask:0xf bank_mask:0xf\ns_nop 1")
    A("v_add_f32_dpp v40, v40, v40 row_ror:8 row_mask:0xf bank_mask:0xf")
    A("v_cvt_pk_bf16_f32 v40, v40, v40")
    A("buffer_store_short v40, v3, s[36:39], s59 offen")
    A("s_cmp_lg_u32 s2, 0\ns_cbranch_scc1 L_Y4END")
    A(f"v_mov_b32 v40, s{S_TAG}\nv_cmp_eq_u32 vcc, 0, v0\ns_nop 1\nv_cndmask_b32 v3, v19, v17, vcc")
    A(f"buffer_store_dword v40, v3, s[40:43], 0 offen offset:{WOFF}")
    A.label("L_Y4END")
    if diag:
        stamp(9)
        stamp_store(24, [1, 2, 3, 4, 5, 6, 7, 8, 9])
    A("s_endpgm")

    A.label("L_Y5")
    A("s_cmp_ge_u32 s31, 28\ns_cbranch_scc1 L_END")
    A(f"s_lshl_b32 s46, s31, 14\ns_lshl_b32 s47, s29, 11\ns_add_u32 s46, s46, s47\ns_add_u32 s60, s46, {HP}")
    A(f"s_lshl_b32 s46, s31, 11\ns_lshl_b32 s47, s29, 8\ns_add_u32 s46, s46, s47\ns_add_u32 s59, s46, {HF}")
    A("v_lshlrev_b32 v3, 2, v0")
    A(f"ds_read_b64 v[52:53], v17 offset:{L_G}")
    lp = A.newlabel("HPOLL"); A.label(lp)
    for r in range(8): A(f"buffer_load_dword v{40+r}, v3, s[40:43], s60 offen offset:{r*256} sc1")
    A("s_waitcnt vmcnt(0) lgkmcnt(0)")
    msad(range(40, 48), 39)
    poll_tail(39, lp, 8)
    A("v_add_f32 v40, v40, v41\nv_add_f32 v42, v42, v43\nv_add_f32 v44, v44, v45\nv_add_f32 v46, v46, v47\nv_add_f32 v40, v40, v42\nv_add_f32 v44, v44, v46\nv_add_f32 v40, v40, v44")
    A("v_cvt_pk_bf16_f32 v40, v40, v40\nv_lshlrev_b32 v40, 16, v40")
    A("v_mul_f32 v41, 0xbfb8aa3b, v40\nv_exp_f32 v41, v41\ns_nop 0\nv_add_f32 v41, 1.0, v41\nv_rcp_f32 v41, v41\ns_nop 0\nv_mul_f32 v40, v40, v41")
    A("v_cvt_pk_bf16_f32 v40, v40, v40\nv_lshlrev_b32 v40, 16, v40\nv_mul_f32 v40, v40, v53")
    tag([40], 18)
    A("buffer_store_dword v40, v3, s[40:43], s59 offen sc1")
    A("s_endpgm")

    A.label("L_Y6")
    lds_wait4(L_XQ, 3, 40, 17)
    A(f"ds_read_b128 v[40:43], v17 offset:{L_L}\nds_read_b128 v[44:47], v17 offset:{L_L+16}\nds_read_b64 v[60:61], v17 offset:{L_G}\ns_waitcnt lgkmcnt(0)")
    A("v_add_f32 v40, v40, v42\nv_add_f32 v44, v44, v46\nv_add_f32 v40, v40, v44\nv_add_f32 v41, v41, v43\nv_add_f32 v45, v45, v47\nv_add_f32 v41, v41, v45")
    A("v_and_b32 v42, 1, v0\nv_cmp_eq_u32 vcc, 1, v42\ns_nop 1\nv_cndmask_b32 v44, v52, v53, vcc\nv_cndmask_b32 v46, v40, v41, vcc")
    A("v_lshlrev_b32 v45, 8, v44\nv_mov_b32 v47, v46")
    tag([44, 45, 46, 47], 18)
    A(f"s_lshl_b32 s46, s29, 3\ns_add_u32 s46, s46, s28\ns_lshl_b32 s46, s46, 8\ns_add_u32 s60, s46, {ML}\ns_lshl_b32 s47, s30, 6\ns_add_u32 s59, s60, s47")
    A("v_lshlrev_b32 v3, 4, v0\nv_cmp_gt_u32 vcc, 4, v0\ns_nop 1\nv_cndmask_b32 v4, v19, v3, vcc")
    A("buffer_store_dwordx4 v[44:47], v4, s[40:43], s59 offen sc1")
    A("v_and_b32 v3, 0xff, v3")
    lp = A.newlabel("MPOLL"); A.label(lp)
    A("buffer_load_dwordx4 v[44:47], v3, s[40:43], s60 offen sc1")
    A("s_waitcnt vmcnt(0)")
    msad(range(44, 48), 39)
    poll_tail(39, lp, 8)
    A("v_bfe_u32 v45, v45, 8, 8\nv_and_or_b32 v44, v44, v18, v45")
    A("v_mov_b32 v48, v44\ns_nop 1\nv_max_f32_dpp v48, v48, v48 row_ror:4 row_mask:0xf bank_mask:0xf\ns_nop 1\nv_max_f32_dpp v48, v48, v48 row_ror:8 row_mask:0xf bank_mask:0xf")
    A("s_mov_b32 s47, 0x3db8aa3b")
    A("v_sub_f32 v44, v44, v48\nv_mul_f32 v44, s47, v44\nv_exp_f32 v44, v44\ns_nop 0\nv_mul_f32 v46, v46, v44\ns_nop 1")
    A("v_add_f32_dpp v46, v46, v46 row_ror:4 row_mask:0xf bank_mask:0xf\ns_nop 1\nv_add_f32_dpp v46, v46, v46 row_ror:8 row_mask:0xf bank_mask:0xf")
    A("v_cmp_eq_u32 vcc, 1, v42\ns_nop 1\nv_cndmask_b32 v44, v52, v53, vcc")
    A("v_sub_f32 v44, v44, v48\nv_mul_f32 v44, s47, v44\nv_exp_f32 v44, v44\nv_rcp_f32 v46, v46\ns_nop 0\nv_mul_f32 v44, v44, v46\nv_mul_f32 v44, v44, v60")
    A(f"v_lshlrev_b32 v42, 2, v42\nds_write_b32 v42, v44 offset:{L_SC+8}")
    A(f"v_mov_b32 v38, 1\ns_waitcnt lgkmcnt(0)\nds_write_b32 v17, v38 offset:{L_SC}")
    if diag:
        stamp(6)
        stamp_store(36, [6])
    A("s_endpgm")

    A.label("L_Y7")
    A("s_cmp_eq_u32 s29, 7\ns_cbranch_scc1 L_END")
    A("v_lshlrev_b32 v38, 5, v0")
    A("s_cmp_ge_u32 s31, 28\ns_cbranch_scc1 L_Y7Z")
    A.srd(36, 18, 1792*448*2)
    A("v_mul_u32_u24 v3, 7168, v2\nv_lshl_add_u32 v3, v1, 4, v3")
    A(f"s_mul_i32 s46, s31, {64*896}\ns_lshl_b32 s47, s29, 7\ns_add_u32 s58, s46, s47\ns_add_u32 s59, s58, 3584")
    A("v_lshlrev_b32 v4, 8, v16\nv_lshl_add_u32 v4, v7, 5, v4")
    A(f"s_lshl_b32 s60, s31, 11\ns_add_u32 s60, s60, {HF}")
    lds_wait4(L_F, 3, 40, 17)
    for e in range(8):
        A(f"buffer_load_dwordx4 {vr(64+4*e)}, v3, s[36:39], s{58 + (e>>2)} offen offset:{(e&3)*896}{wpol}")
    lp = A.newlabel("H2POLL"); A.label(lp)
    A("buffer_load_dwordx4 v[40:43], v4, s[40:43], s60 offen sc1\nbuffer_load_dwordx4 v[44:47], v4, s[40:43], s60 offen offset:16 sc1")
    A("s_waitcnt vmcnt(0)")
    msad(range(40, 48), 39)
    poll_tail(39, lp, 4)
    for k in range(4): A(f"v_cvt_pk_bf16_f32 v{8+k}, v{40+2*k}, v{41+2*k}")
    perms(64, 96); A("s_nop 1")
    mfma8(XACC, 8, 96, True)
    A("s_nop 7")
    extract8(XACC, XRES, XTMP, 56)
    A.label("L_Y7W")
    A(f"ds_write_b128 v38, {vr(XRES)} offset:{L_W2R}\nds_write_b128 v38, {vr(XRES+4)} offset:{L_W2R+16}")
    A(f"v_mov_b32 v39, 1\ns_waitcnt lgkmcnt(0)\nds_write_b32 v17, v39 offset:{L_W2F}")
    A("s_endpgm")
    A.label("L_Y7Z")
    for k in range(8): A(f"v_mov_b32 v{XRES+k}, 0")
    A("s_branch L_Y7W")

    A.label("L_END")
    A("s_endpgm")
    tail = ['.section .rodata,"a"', ".p2align 6", f".amdhsa_kernel {NAME}_kernel",
            "  .amdhsa_next_free_vgpr 256", "  .amdhsa_next_free_sgpr 100", "  .amdhsa_accum_offset 256",
            "  .amdhsa_group_segment_fixed_size 0", "  .amdhsa_kernarg_size 96", "  .amdhsa_user_sgpr_count 2",
            "  .amdhsa_user_sgpr_kernarg_segment_ptr 1", "  .amdhsa_system_sgpr_workgroup_id_x 1",
            "  .amdhsa_float_denorm_mode_32 3", ".end_amdhsa_kernel"]
    return "\n".join(hdr + A.L + tail) + "\n"

if __name__ == "__main__":
    import argparse
    ap = argparse.ArgumentParser()
    ap.add_argument("-o", default="k.s")
    ap.add_argument("--D", type=int, default=6)
    ap.add_argument("--diag", action="store_true")
    ap.add_argument("--qgate", type=int, default=1)
    ap.add_argument("--VT", type=int, default=32)
    ap.add_argument("--so", action="store_true")
    ap.add_argument("--delay", type=int, default=0)
    ap.add_argument("--dbgst", action="store_true")
    ap.add_argument("--kvpol", default=" nt")
    ap.add_argument("--est", type=int, default=0)
    ap.add_argument("--abl", type=int, default=0)
    ap.add_argument("--wpol", default=" nt")
    ap.add_argument("--rotm", type=int, default=0)
    ap.add_argument("--mapm", type=int, default=0)
    a = ap.parse_args()
    open(a.o, "w").write(gen(D=a.D, diag=a.diag, qgate=a.qgate, VT=a.VT, so=a.so, rotm=a.rotm, mapm=a.mapm, abl=a.abl, delay=a.delay, dbgst=a.dbgst, kvpol=a.kvpol, est=a.est, wpol=a.wpol))
```

```python
import sys
NAME = "gated_mix__sliding_block_cached__dense_activation_silu__decode"

import os
XB = int(os.environ.get("XB", "0"), 0)
WOFF = 0
QP = XB + 0x1000
HP = QP + 0x80000
HF = HP + 0x70000
ML = HF + 0xE000
OP = ML + 0x4000
FP = OP + 0x80000
assert FP + 0x70000 <= XB + 0x200000
STAMP = 0x10000000
L_K = 8192
L_QB = 0
L_PB = L_QB + 1024
L_ZERO = L_PB + 1024
L_MISC = L_ZERO + 512
L_F = L_MISC
L_XQ = L_MISC + 16
L_SC = L_MISC + 32
L_W2F = L_MISC + 48
L_G = L_MISC + 64
L_M = L_MISC + 80
L_L = L_MISC + 112
L_W2R = L_MISC + 512
assert L_W2R + 2048 <= L_K
LDS_BYTES = L_K + 131072

OOB = 0x40000000
POLL_MAX = 200000

class E:
    def __init__(self):
        self.L = []
        self.n = 0
    def __call__(self, s):
        for x in s.split("\n"):
            x = x.strip()
            if x: self.L.append("    " + x)
    def label(self, s): self.L.append(s + ":")
    def newlabel(self, p="L"):
        self.n += 1
        return f"{p}_{self.n}"
    def srd(self, d, b, n):
        self(f"s_mov_b32 s{d}, s{b}\ns_mov_b32 s{d+1}, s{b+1}\ns_mov_b32 s{d+2}, {n}\ns_mov_b32 s{d+3}, 0x20000")

def vr(b, n=4): return f"v[{b}:{b+n-1}]"

def gen(D=6, diag=False, qgate=1, sleep_q=4, sleep_o=0, sleep_f=0, wpol=" nt", VT=32, rotm=0, so=False, mapm=0, abl=0, est=0, kvpol=" nt", dbgst=False, delay=0, endat=0):
    A = E()
    S_TAG = 50; S_SELLO = 52; S_SELHI = 53; S_IT = 54
    NST = 8
    def stamp(k):
        if diag: A(f"s_memrealtime s[{80+2*k}:{81+2*k}]")
    def stamp_store(slot0, ks, wavemul=0):
        if not diag: return
        A("s_waitcnt lgkmcnt(0)")
        A("s_mov_b64 exec, 1")
        if dbgst:
            A.srd(36, 24, 256)
            base = {0: 0, 24: 6, 36: 15}[slot0]
            for n, k in enumerate(ks):
                A(f"v_mov_b32 v2, {4*(base+n+(1 if slot0 == 0 else 0))}\nv_mov_b32 v4, s{80+2*k}")
                A("buffer_atomic_umax v4, v2, s[36:39], 0 offen\ns_nop 1")
                if slot0 == 0 and k == 0:
                    A(f"s_not_b32 s46, s80\nv_mov_b32 v2, 0\nv_mov_b32 v4, s46\nbuffer_atomic_umax v4, v2, s[36:39], 0 offen\ns_nop 1")
            A("s_mov_b64 exec, -1")
            return
        for n, k in enumerate(ks):
            A(f"s_lshl_b32 s46, s2, 9\ns_add_u32 s46, s46, {STAMP + 8*(slot0+n)}\ns_mul_i32 s47, s3, {8*wavemul}\ns_add_u32 s46, s46, s47\nv_mov_b32 v2, s46")
            A(f"v_mov_b32 v4, s{80+2*k}\nv_mov_b32 v5, s{81+2*k}")
            A("buffer_store_dwordx2 v[4:5], v2, s[40:43], 0 offen")
            A("s_nop 1")
        A("s_mov_b64 exec, -1")

    def lds_wait4(off, k, va, vz):
        l = A.newlabel("LW"); d = A.newlabel("LWD")
        A.label(l)
        A(f"ds_read_b128 {vr(va)}, v{vz} offset:{off}")
        A("s_waitcnt lgkmcnt(0)")
        A(f"v_min_u32 v{va}, v{va}, v{va+1}\nv_min3_u32 v{va}, v{va}, v{va+2}, v{va+3}\ns_nop 0")
        A(f"v_readfirstlane_b32 s46, v{va}\ns_nop 0")
        A(f"s_cmp_ge_u32 s46, {k}\ns_cbranch_scc1 {d}\ns_sleep 1\ns_branch {l}")
        A.label(d)
    def lds_wait1(vaddr, off, k, va):
        l = A.newlabel("LW"); d = A.newlabel("LWD")
        A.label(l)
        A(f"ds_read_b32 v{va}, v{vaddr} offset:{off}")
        A("s_waitcnt lgkmcnt(0)")
        A(f"v_readfirstlane_b32 s46, v{va}\ns_nop 0")
        A(f"s_cmp_ge_u32 s46, {k}\ns_cbranch_scc1 {d}\ns_sleep 1\ns_branch {l}")
        A.label(d)
    def perms_pair(L, T, a):
        for jj in range(4):
            lo = L + 4*(2*a) + jj; hi = L + 4*(2*a+1) + jj
            A(f"v_perm_b32 v{T + 4*(2*jj) + a}, v{hi}, v{lo}, s{S_SELLO}")
            A(f"v_perm_b32 v{T + 4*(2*jj+1) + a}, v{hi}, v{lo}, s{S_SELHI}")
    def perms(L, T):
        for a in range(4): perms_pair(L, T, a)
    def mfma8(acc, Areg, T, first):
        for c in range(8):
            cin = "0" if first else vr(acc + 4*c)
            A(f"v_mfma_f32_16x16x32_bf16 {vr(acc+4*c)}, {vr(Areg)}, {vr(T+4*c)}, {cin}")
    def extract8(acc, res, tmp, smask):
        for c in range(8):
            A(f"v_cndmask_b32 v{tmp+c}, v{acc+4*c+2}, v{acc+4*c+1}, s[{smask}:{smask+1}]")
            A(f"v_cndmask_b32 v{res+c}, v{acc+4*c+0}, v{acc+4*c+3}, s[{smask}:{smask+1}]")
        for c in range(8):
            A(f"v_add_f32_dpp v{res+c}, v{tmp+c}, v{res+c} row_ror:8 row_mask:0xf bank_mask:0xf")
    def tag(regs, vmask):
        for r in regs: A(f"v_and_or_b32 v{r}, v{r}, v{vmask}, s{S_TAG}")
    def msad(regs, vacc):
        for n, r in enumerate(regs):
            A(f"v_msad_u8 v{vacc}, v{r}, s{S_TAG}, {'0' if n == 0 else 'v'+str(vacc)}")
    def poll_tail(vacc, loop, sleep):
        d = A.newlabel("PD")
        A(f"v_cmp_ne_u32 vcc, 0, v{vacc}")
        A(f"s_add_u32 s{S_IT}, s{S_IT}, 1")
        A(f"s_cmp_ge_u32 s{S_IT}, {POLL_MAX}\ns_cbranch_scc1 {d}")
        A(f"s_cmp_eq_u64 vcc, 0\ns_cbranch_scc1 {d}")
        if sleep: A(f"s_sleep {sleep}")
        A(f"s_branch {loop}")
        A.label(d)
    def prog_poll(groups, vaddr, ssoff, macc, sleep):
        for (m, lds_, sm) in groups: A(f"s_mov_b64 s[{m}:{m+1}], -1")
        lp = A.newlabel("PP"); dn = A.newlabel("PPD")
        A.label(lp)
        for (m, lds_, sm) in groups:
            sk = A.newlabel("PS")
            A(f"s_mov_b64 exec, s[{m}:{m+1}]\ns_cbranch_execz {sk}")
            for (r, imm) in lds_: A(f"buffer_load_dwordx4 {vr(r)}, v{vaddr}, s[40:43], s{ssoff} offen offset:{imm} sc1")
            A.label(sk)
        A("s_waitcnt vmcnt(0)")
        for (m, lds_, sm) in groups:
            sk = A.newlabel("PS")
            A(f"s_mov_b64 exec, s[{m}:{m+1}]\ns_cbranch_execz {sk}")
            regs = [r + k for (r, imm) in lds_ for k in range(4)]
            msad(regs, macc)
            A(f"v_cmp_eq_u32 vcc, 0, v{macc}")
            A(f"s_andn2_b64 s[{m}:{m+1}], s[{m}:{m+1}], vcc\ns_mov_b64 exec, vcc")
            for n, r in enumerate(regs): A(f"v_add_f32 v{sm+n}, v{sm+n}, v{r}")
            A.label(sk)
        m0 = groups[0][0]
        A(f"s_mov_b64 s[48:49], s[{m0}:{m0+1}]")
        for (m, lds_, sm) in groups[1:]: A(f"s_or_b64 s[48:49], s[48:49], s[{m}:{m+1}]")
        A(f"s_add_u32 s{S_IT}, s{S_IT}, 1\ns_cmp_ge_u32 s{S_IT}, {POLL_MAX}\ns_cbranch_scc1 {dn}")
        A(f"s_cmp_eq_u64 s[48:49], 0\ns_cbranch_scc1 {dn}")
        if sleep: A(f"s_sleep {sleep}")
        A(f"s_branch {lp}")
        A.label(dn)
        A("s_mov_b64 exec, -1")
    def early_store():
        if est == 1: return
        if est == 2:
            A("v_lshlrev_b32 v36, 4, v1\nv_sub_u32 v3, v3, v36")
            A(f"buffer_store_dwordx4 {vr(20)}, v3, s[40:43], s46 offen sc1")
            A(f"buffer_store_dwordx4 {vr(24)}, v3, s[40:43], s46 offen offset:128 sc1")
            return
        if est == 4:
            A("s_mov_b64 exec, 1")
            A(f"buffer_store_dwordx4 {vr(20)}, v3, s[40:43], s46 offen sc1")
            A("s_mov_b64 exec, -1")
            return
        if est == 5:
            A("s_mov_b64 exec, 0xff")
            A("v_lshlrev_b32 v36, 4, v1\nv_sub_u32 v3, v3, v36")
            A(f"buffer_store_dwordx4 {vr(20)}, v3, s[40:43], s46 offen sc1")
            A("s_mov_b64 exec, -1")
            return
        if est == 6:
            A("v_lshlrev_b32 v36, 4, v1\nv_sub_u32 v3, v3, v36")
            A(f"buffer_store_dwordx4 {vr(20)}, v3, s[40:43], s46 offen sc1")
            return
        if est == 7:
            A("v_lshlrev_b32 v36, 4, v1\nv_sub_u32 v3, v3, v36")
            A(f"buffer_store_dwordx4 {vr(20)}, v3, s[40:43], s46 offen")
            A(f"buffer_store_dwordx4 {vr(24)}, v3, s[40:43], s46 offen offset:128")
            return
        if est == 8:
            A("v_lshlrev_b32 v36, 4, v1\nv_sub_u32 v3, v3, v36")
            A(f"buffer_store_dwordx4 {vr(20)}, v3, s[40:43], s46 offen sc0 sc1")
            A(f"buffer_store_dwordx4 {vr(24)}, v3, s[40:43], s46 offen offset:128 sc0 sc1")
            return
        if est == 9:
            A("v_lshlrev_b32 v36, 4, v1\nv_sub_u32 v3, v3, v36")
            A(f"buffer_store_dwordx4 {vr(20)}, v3, s[40:43], s46 offen sc1 nt")
            A(f"buffer_store_dwordx4 {vr(24)}, v3, s[40:43], s46 offen offset:128 sc1 nt")
            return
        pol = " sc1" if est == 0 else ""
        A(f"buffer_store_dwordx4 {vr(20)}, v3, s[40:43], s46 offen{pol}")
        A(f"buffer_store_dwordx4 {vr(24)}, v3, s[40:43], s46 offen offset:16{pol}")
    def load_tag():
        A(f"s_load_dword s{S_TAG}, s[26:27], {WOFF}")
    def make_tag():
        A(f"s_and_b32 s{S_TAG}, s{S_TAG}, 0xff\ns_cmp_eq_u32 s{S_TAG}, 0xff\ns_cselect_b32 s{S_TAG}, 0, s{S_TAG}\ns_add_u32 s{S_TAG}, s{S_TAG}, 1")
    def allreduce2(a0, a1, t0, t1, op):
        A(f"v_mov_b32 v{t0}, v{a0}\nv_mov_b32 v{t1}, v{a1}\ns_nop 1")
        A(f"v_permlane32_swap_b32 v{t0}, v{t1}\ns_nop 1")
        A(f"{op} v{t0}, v{t0}, v{t1}\ns_nop 0\nv_mov_b32 v{t1}, v{t0}\ns_nop 1")
        A(f"v_permlane16_swap_b32 v{t0}, v{t1}\ns_nop 1")
        A(f"{op} v{t0}, v{t0}, v{t1}\ns_nop 1")
        for r in (1, 2, 4, 8):
            A(f"{op}_dpp v{t0}, v{t0}, v{t0} row_ror:{r} row_mask:0xf bank_mask:0xf\ns_nop 1")

    hdr = []
    hdr.append(f"; @launch grid=(256,1,1) block=(512,1,1) lds={LDS_BYTES}")
    hdr.append('.amdgcn_target "amdgcn-amd-amdhsa--gfx950"')
    hdr.append(".text"); hdr.append(f".globl {NAME}_kernel"); hdr.append(".p2align 8"); hdr.append(f".type {NAME}_kernel,@function")
    hdr.append(f"{NAME}_kernel:")

    A("s_cmp_ge_u32 s2, 256\ns_cbranch_scc1 L_END")
    stamp(0)
    if endat: A("s_memrealtime s[98:99]")
    if delay:
        A("s_memrealtime s[60:61]\ns_waitcnt lgkmcnt(0)")
        A.label("L_DLY")
        A(f"s_memrealtime s[62:63]\ns_waitcnt lgkmcnt(0)\ns_sub_u32 s64, s62, s60\ns_cmp_lt_u32 s64, {delay}\ns_cbranch_scc1 L_DLY")
    if diag:
        for k in range(82, 100): A(f"s_mov_b32 s{k}, 0")
    A("s_load_dwordx16 s[4:19], s[0:1], 0")
    A("s_load_dwordx8 s[20:27], s[0:1], 64")
    A("v_lshrrev_b32 v1, 6, v0\nv_and_b32 v0, 63, v0")
    A("s_and_b32 s28, s2, 7")
    A("v_readfirstlane_b32 s3, v1")
    A("s_bfe_u32 s29, s2, 0x30003")
    A("s_lshr_b32 s30, s2, 6")
    if mapm == 1:
        A("s_mov_b32 s46, s28\ns_mov_b32 s28, s29\ns_mov_b32 s29, s46")
    if mapm == 2:
        A("s_add_u32 s28, s28, 2\ns_and_b32 s28, s28, 7")
    if mapm == 3:
        A("s_xor_b32 s29, s29, 4")
    A("s_lshl_b32 s31, s30, 3\ns_add_u32 s31, s31, s28")
    A(f"s_mov_b32 s{S_SELLO}, 0x05040100\ns_mov_b32 s{S_SELHI}, 0x07060302\ns_mov_b32 s{S_IT}, 0")
    A("s_mov_b32 s56, 0xff00ff00\ns_mov_b32 s57, 0xff00ff00")
    A("s_cmp_ge_u32 s3, 4\ns_cbranch_scc1 L_X")

    LB = [64, 96, 128, 160]; SP = 192
    TB = [SP, LB[0], LB[1], LB[2]]
    ACC = 12; AV = 20
    A("s_lshl_b32 s44, s29, 3\ns_add_u32 s44, s44, s28\ns_lshl_b32 s44, s44, 21\ns_add_u32 s44, s44, 0x180000")
    A("s_lshl_b32 s45, s30, 17\ns_add_u32 s44, s44, s45")
    A("s_lshl_b32 s58, s3, 15")
    A("s_add_u32 s59, s44, s58")
    A(f"s_add_u32 s58, s58, {L_K}")
    if rotm == 0:
        A("s_lshr_b32 s45, s2, 3\ns_add_u32 s45, s45, s2\ns_lshl_b32 s46, s3, 3\ns_add_u32 s45, s45, s46")
    elif rotm == 1:
        A("s_lshr_b32 s45, s2, 3\ns_lshl_b32 s46, s3, 3\ns_add_u32 s45, s45, s46")
    elif rotm == 2:
        A("s_lshl_b32 s45, s2, 2\ns_bfe_u32 s46, s2, 0x20003\ns_add_u32 s45, s45, s46\ns_lshl_b32 s46, s3, 3\ns_add_u32 s45, s45, s46")
    elif rotm == 3:
        A("s_lshl_b32 s45, s2, 2\ns_add_u32 s45, s45, s3\ns_mul_i32 s45, s45, 0x9e3779b1\ns_lshr_b32 s45, s45, 27")
    A("v_lshrrev_b32 v1, 5, v0\nv_and_b32 v2, 31, v0\nv_xor_b32 v2, v2, v1\nv_lshlrev_b32 v2, 4, v2\nv_lshl_add_u32 v2, v1, 9, v2")
    A("v_lshrrev_b32 v1, 3, v0\nv_lshlrev_b32 v4, 12, v1\nv_and_b32 v1, 7, v0\nv_lshl_add_u32 v4, v1, 4, v4")
    A("s_lshl_b32 s46, s3, 7\nv_add_u32 v4, s46, v4")
    A("v_mov_b32 v10, 0")
    A("s_lshl_b32 s46, s3, 2\nv_mov_b32 v11, s46")
    A("s_waitcnt lgkmcnt(0)")
    A.srd(32, 6, 0x8000000)
    nissued = 0
    def throttle():
        if nissued >= D: A(f"s_waitcnt vmcnt({D-1})")
    for u in range(32):
        A(f"s_add_u32 s46, s45, {u}\ns_and_b32 s46, s46, 31\ns_lshl_b32 s47, s46, 10\ns_add_u32 s48, s47, s59\ns_add_u32 m0, s47, s58")
        A("s_lshl_b32 s49, s46, 5\ns_and_b32 s49, s49, 0xe0\nv_xor_b32 v3, s49, v2")
        A(f"buffer_load_dwordx4 v3, s[32:35], s48 offen{kvpol} lds")
        nissued += 1
        if u == min(D, 4) - 1:
            A.srd(36, 8, 0x8000000); A.srd(40, 26, 0x20000000)
            load_tag()
            A("s_barrier")
        throttle()
        if nissued - (D - 1) == 16:
            A(f"v_mov_b32 v9, 1\nds_write_b32 v11, v9 offset:{L_F}")
    done_pairs = 0
    def v_progress(complete):
        nonlocal done_pairs
        while (done_pairs + 1) * 2 <= complete:
            kb, a = divmod(done_pairs, 4)
            perms_pair(LB[kb], TB[kb], a)
            done_pairs += 1
    for n in range(32):
        kb, e = divmod(n, 8)
        if e == 0: A(f"s_add_u32 s48, s44, {kb*32768}")
        A(f"buffer_load_dwordx4 {vr(LB[kb] + 4*e)}, v4, s[36:39], s48 offen offset:{e*512}{kvpol}")
        nissued += 1
        throttle()
        comp = nissued - (D - 1)
        if comp == 32:
            A(f"v_mov_b32 v9, 2\nds_write_b32 v11, v9 offset:{L_F}")
            stamp(1)
        v_progress(comp - 32)
        if n == VT - 1:
            assert comp > 32
            A(f"v_mov_b32 v9, 3\nds_write_b32 v11, v9 offset:{L_F}")
    stamp(2)
    A("s_setprio 3")
    A("s_waitcnt lgkmcnt(0)")
    make_tag()
    A("v_and_b32 v1, 15, v0\nv_lshrrev_b32 v2, 4, v0")
    A("v_bfe_u32 v3, v1, 1, 1\nv_lshlrev_b32 v3, 9, v3")
    A("v_lshl_add_u32 v3, v2, 5, v3\nv_and_b32 v9, 1, v1\nv_lshl_add_u32 v3, v9, 4, v3")
    A(f"v_add_u32 v3, {L_PB}, v3\nv_mov_b32 v9, {L_ZERO}\nv_lshrrev_b32 v1, 2, v1")
    for q in range(4):
        A(f"v_cmp_eq_u32 vcc, {q}, v1\ns_nop 1\nv_cndmask_b32 v{5+q}, v9, v3, vcc")
    A("v_bfe_u32 v1, v0, 3, 1\nv_lshlrev_b32 v1, 15, v1")
    A("v_and_b32 v3, 7, v0\nv_lshl_add_u32 v1, v3, 5, v1\nv_lshl_add_u32 v1, v2, 3, v1")
    A("s_lshl_b32 s46, s28, 2\ns_lshr_b32 s47, s3, 1\ns_add_u32 s46, s46, s47\ns_lshl_b32 s46, s46, 14")
    A("s_lshl_b32 s47, s29, 11\ns_add_u32 s46, s46, s47\ns_lshl_b32 s47, s30, 9\ns_add_u32 s46, s46, s47")
    A(f"s_and_b32 s47, s3, 1\ns_lshl_b32 s47, s47, 8\ns_add_u32 s46, s46, s47\ns_add_u32 s60, s46, {OP}")
    A("v_mov_b32 v36, 0xffffff00")
    A(f"v_bfe_u32 v37, v0, 3, 1\nv_lshlrev_b32 v37, 2, v37")
    if not so: lds_wait4(L_XQ, 3, 40, 10)
    def pv(kb, first):
        for q in range(4): A(f"ds_read_b128 {vr(AV+4*q)}, v{5+q} offset:{kb*128}")
        for c in range(8):
            if c < 4: A(f"s_waitcnt lgkmcnt({3-c})")
            a = ACC + 4*(c >> 2)
            cin = "0" if (first and (c & 3) == 0) else vr(a)
            A(f"v_mfma_f32_16x16x32_bf16 {vr(a)}, {vr(AV+4*(c&3))}, {vr(TB[kb]+4*c)}, {cin}")
    assert D <= 9
    for kb in range(3):
        assert done_pairs >= 4*(kb+1)
        pv(kb, kb == 0)
    if not so: lds_wait1(10, L_SC, 1, 40)
    A(f"ds_read_b32 v38, v37 offset:{L_SC+8}")
    for w in range(D - 2, -1, -1):
        A(f"s_waitcnt vmcnt({w})")
        v_progress(32 - w)
    stamp(3)
    A(f"v_mov_b32 v9, 4\nds_write_b32 v11, v9 offset:{L_F}")
    pv(3, False)
    A("s_nop 7")
    for a in range(2):
        b_ = ACC + 4*a
        A(f"v_cndmask_b32 v{42+a}, v{b_+2}, v{b_+1}, s[56:57]")
        A(f"v_cndmask_b32 v{40+a}, v{b_+0}, v{b_+3}, s[56:57]")
    A("s_nop 0")
    for a in range(2):
        A(f"v_add_f32_dpp v{40+a}, v{42+a}, v{40+a} row_ror:8 row_mask:0xf bank_mask:0xf")
    A("v_mul_f32 v40, v40, v38\nv_mul_f32 v41, v41, v38")
    tag([40, 41], 36)
    A("buffer_store_dwordx2 v[40:41], v1, s[40:43], s60 offen sc1")
    stamp(4)
    if diag:
        stamp_store(0, [0, 1, 2, 3, 4], wavemul=5)
    A("s_endpgm")

    A.label("L_X")
    if so and abl == 0: A("s_barrier\ns_endpgm")
    A("s_setprio 3")
    A("s_sub_u32 s61, s3, 4")
    A("v_and_b32 v1, 7, v0\nv_lshrrev_b32 v2, 3, v0")
    A("v_and_b32 v5, 15, v0\nv_lshrrev_b32 v6, 4, v0")
    A("v_and_b32 v7, 1, v5\nv_lshl_add_u32 v7, v6, 1, v7")
    A("v_lshrrev_b32 v16, 1, v5")
    A("v_mov_b32 v17, 0\nv_mov_b32 v18, 0xffffff00")
    A(f"v_mov_b32 v19, {OOB}")
    A("v_mul_u32_u24 v4, 896, v16\nv_lshl_add_u32 v4, v7, 4, v4")
    A("v_cmp_eq_u32 vcc, 7, v7\ns_nop 1\nv_cndmask_b32 v4, v4, v19, vcc")
    A("v_cmp_eq_u32 s[62:63], 7, v2")
    A("s_waitcnt lgkmcnt(0)")
    A.srd(40, 26, 0x20000000); A.srd(32, 4, 7168)
    load_tag()
    XL = [64, 96, 128]; XT = [160, 192]; XACC = 224; XA = [8, 12]; XRES = 20; XTMP = 28
    A("s_cmp_eq_u32 s3, 5\ns_cbranch_scc1 L_X5\ns_cmp_eq_u32 s3, 6\ns_cbranch_scc1 L_X6\ns_cmp_eq_u32 s3, 7\ns_cbranch_scc1 L_X7")
    A.srd(36, 10, 448*4096*2)
    A("v_lshlrev_b32 v3, 16, v2\nv_lshl_add_u32 v3, v1, 4, v3\nv_cndmask_b32 v3, v3, v19, s[62:63]")
    A(f"s_mul_i32 s46, s30, {112*8192}\ns_lshl_b32 s47, s28, 3\ns_add_u32 s47, s47, s29\ns_lshl_b32 s47, s47, 7\ns_add_u32 s46, s46, s47")
    A("s_mul_i32 s47, s30, 224")
    for blk in range(2):
        for e in range(8):
            A(f"s_add_u32 s48, s46, {(56*blk+e)*8192}")
            A(f"buffer_load_dwordx4 {vr(XL[blk]+4*e)}, v3, s[36:39], s48 offen{wpol}")
        A(f"buffer_load_dwordx4 {vr(XA[blk])}, v4, s[32:35], s47 offen offset:{112*blk}")
    A("s_barrier")
    A("v_lshlrev_b32 v3, 16, v2\nv_lshl_add_u32 v3, v1, 5, v3")
    A("s_lshl_b32 s46, s28, 1\ns_lshr_b32 s47, s29, 2\ns_add_u32 s46, s46, s47\ns_lshl_b32 s46, s46, 12")
    A(f"s_lshl_b32 s47, s30, 10\ns_add_u32 s46, s46, s47\ns_and_b32 s47, s29, 3\ns_lshl_b32 s47, s47, 8\ns_add_u32 s46, s46, s47\ns_add_u32 s46, s46, {QP}")
    A("s_waitcnt vmcnt(9)")
    perms(XL[0], XT[0]); A("s_nop 1"); mfma8(XACC, XA[0], XT[0], True)
    A("s_waitcnt vmcnt(0)")
    perms(XL[1], XT[1]); A("s_nop 1"); mfma8(XACC, XA[1], XT[1], False)
    A("s_waitcnt lgkmcnt(0)"); make_tag(); A("s_nop 3")
    extract8(XACC, XRES, XTMP, 56)
    tag(range(XRES, XRES+8), 18)
    early_store()
    stamp(1)
    A("s_branch L_XMID")
    A.label("L_X5")
    A.srd(36, 16, 448*1792*2)
    A(f"v_mul_u32_u24 v3, {8*3584}, v2\nv_lshl_add_u32 v3, v1, 4, v3\nv_cndmask_b32 v3, v3, v19, s[62:63]")
    A(f"s_mul_i32 s46, s29, {56*3584}\ns_lshl_b32 s47, s31, 7\ns_add_u32 s46, s46, s47")
    A("s_mul_i32 s47, s29, 112")
    A("s_cmp_ge_u32 s31, 28\ns_cbranch_scc1 L_X5S")
    for e in range(8):
        A(f"s_add_u32 s48, s46, {e*3584}")
        A(f"buffer_load_dwordx4 {vr(XL[0]+4*e)}, v3, s[36:39], s48 offen{wpol}")
    A(f"buffer_load_dwordx4 {vr(XA[0])}, v4, s[32:35], s47 offen")
    A("s_barrier")
    A("v_lshlrev_b32 v3, 11, v2\nv_lshl_add_u32 v3, v1, 5, v3")
    A(f"s_lshl_b32 s46, s31, 14\ns_lshl_b32 s47, s29, 8\ns_add_u32 s46, s46, s47\ns_add_u32 s46, s46, {HP}")
    A("s_waitcnt vmcnt(0)")
    perms(XL[0], XT[0]); A("s_nop 1"); mfma8(XACC, XA[0], XT[0], True)
    A("s_waitcnt lgkmcnt(0)"); make_tag(); A("s_nop 3")
    extract8(XACC, XRES, XTMP, 56)
    tag(range(XRES, XRES+8), 18)
    early_store()
    A("s_branch L_XMID")
    A.label("L_X5S")
    A("s_barrier\ns_waitcnt lgkmcnt(0)"); make_tag()
    A("s_branch L_XMID")
    A.label("L_X6")
    A.srd(36, 20, 896)
    A("v_lshlrev_b32 v3, 4, v0\nv_cmp_gt_u32 vcc, 56, v0\ns_nop 1\nv_cndmask_b32 v3, v19, v3, vcc")
    A("s_mul_i32 s47, s29, 896")
    A("buffer_load_dwordx4 v[8:11], v3, s[32:35], s47 offen")
    A("buffer_load_dwordx4 v[12:15], v3, s[36:39], 0 offen")
    A("s_barrier")
    A("s_waitcnt vmcnt(0)")
    A("v_mov_b32 v20, 0")
    for k in range(4):
        A(f"v_lshlrev_b32 v21, 16, v{8+k}\nv_and_b32 v22, 0xffff0000, v{8+k}\nv_lshlrev_b32 v23, 16, v{12+k}\nv_and_b32 v24, 0xffff0000, v{12+k}")
        A("v_mul_f32 v21, v21, v23\nv_mul_f32 v22, v22, v24\nv_cvt_pk_bf16_f32 v21, v21, v22")
        A("v_lshlrev_b32 v22, 16, v21\nv_and_b32 v21, 0xffff0000, v21\nv_add_f32 v20, v20, v22\nv_add_f32 v20, v20, v21")
    allreduce2(20, 20, 21, 22, "v_add_f32")
    A("v_cvt_pk_bf16_f32 v21, v21, v21\nv_lshlrev_b32 v21, 16, v21")
    A("v_mul_f32 v21, 0xbfb8aa3b, v21\nv_exp_f32 v21, v21\ns_nop 0\nv_add_f32 v21, 1.0, v21\nv_rcp_f32 v21, v21\ns_nop 0")
    A("v_cvt_pk_bf16_f32 v21, v21, v21\nv_lshlrev_b32 v22, 16, v21")
    A("v_sub_f32 v23, 1.0, v22\nv_cvt_pk_bf16_f32 v23, v23, v23\nv_lshlrev_b32 v23, 16, v23")
    A(f"ds_write_b64 v17, v[22:23] offset:{L_G}")
    A("s_waitcnt lgkmcnt(0)"); make_tag()
    A("s_branch L_XMID")
    A.label("L_X7")
    A("v_lshlrev_b32 v3, 4, v0\nv_mov_b32 v8, 0\nv_mov_b32 v9, 0\nv_mov_b32 v10, 0\nv_mov_b32 v11, 0")
    A(f"ds_write_b128 v3, v[8:11] offset:{L_ZERO}")
    A("s_waitcnt lgkmcnt(0)\ns_barrier")
    make_tag()

    A.label("L_XMID")
    if abl == 1: A("s_endpgm")
    A("s_lshl_b32 s46, s61, 2\nv_mov_b32 v36, s46")
    A("s_lshl_b32 s46, s29, 4\ns_lshl_b32 s47, s28, 1\ns_add_u32 s46, s46, s47\ns_lshr_b32 s47, s61, 1\ns_add_u32 s46, s46, s47\ns_lshl_b32 s46, s46, 12")
    A(f"s_and_b32 s47, s61, 1\ns_lshl_b32 s47, s47, 9\ns_add_u32 s46, s46, s47\ns_add_u32 s60, s46, {QP}")
    A("v_lshlrev_b32 v3, 3, v0")
    A(f"s_lshl_b32 s46, s61, 8\ns_add_u32 s46, s46, {L_QB}\nv_lshlrev_b32 v37, 2, v0\nv_add_u32 v37, s46, v37")
    if qgate: lds_wait1(36, L_F, qgate, 40)
    stamp(2)
    lp = A.newlabel("QPOLL"); A.label(lp)
    for r in range(4): A(f"buffer_load_dwordx2 v[{40+2*r}:{41+2*r}], v3, s[40:43], s60 offen offset:{r*1024} sc1")
    A("s_waitcnt vmcnt(0)")
    msad(range(40, 48), 38)
    poll_tail(38, lp, sleep_q)
    A("v_add_f32 v40, v40, v42\nv_add_f32 v41, v41, v43\nv_add_f32 v44, v44, v46\nv_add_f32 v45, v45, v47\nv_add_f32 v40, v40, v44\nv_add_f32 v41, v41, v45")
    A("v_cvt_pk_bf16_f32 v40, v40, v41\nds_write_b32 v37, v40")
    A(f"v_mov_b32 v38, 1\ns_waitcnt lgkmcnt(0)\nds_write_b32 v36, v38 offset:{L_XQ}")
    stamp(3)
    if abl == 2: A("s_endpgm")
    A("v_xor_b32 v39, v6, v5\nv_lshlrev_b32 v39, 4, v39\nv_lshl_add_u32 v39, v5, 9, v39\ns_lshl_b32 s46, s61, 15\ns_add_u32 s46, s46, 8192\nv_add_u32 v48, s46, v39")
    A("v_xor_b32 v49, 64, v48\nv_xor_b32 v50, 0x80, v48\nv_xor_b32 v51, 0xc0, v48")
    A(f"v_and_b32 v39, 1, v5\nv_lshlrev_b32 v39, 9, v39\nv_lshl_add_u32 v39, v6, 4, v39")
    lds_wait4(L_XQ, 1, 40, 17)
    QA = 64; KB_ = 96; SACC = 224
    for t in range(8): A(f"ds_read_b128 {vr(QA+4*t)}, v39 offset:{L_QB + 64*t}")
    lds_wait1(36, L_F, 2, 40)
    stamp(4)
    order = [(tau, t) for t in range(8) for tau in range(4)]
    def kread(n):
        tau, t = order[n]
        A(f"ds_read_b128 {vr(KB_+4*n)}, v{48+(t&3)} offset:{(t>>2)*256 + tau*8192}")
    INF = 8
    for n in range(INF): kread(n)
    for n in range(32):
        tau, t = order[n]
        rem = min(INF - 1, 31 - n)
        A(f"s_waitcnt lgkmcnt({rem})")
        cin = "0" if t == 0 else vr(SACC+4*tau)
        A(f"v_mfma_f32_16x16x32_bf16 {vr(SACC+4*tau)}, {vr(QA+4*t)}, {vr(KB_+4*n)}, {cin}")
        if n + INF < 32: kread(n + INF)
    A("v_cmp_eq_u32 s[64:65], 1, v6\nv_cmp_eq_u32 s[66:67], 2, v6\nv_cmp_eq_u32 s[68:69], 3, v6\ns_nop 5")
    for h in range(2):
        A(f"v_cndmask_b32 v{40+h}, v{SACC+h}, v{SACC+4+h}, s[64:65]")
        A(f"v_cndmask_b32 v{40+h}, v{40+h}, v{SACC+8+h}, s[66:67]")
        A(f"v_cndmask_b32 v{40+h}, v{40+h}, v{SACC+12+h}, s[68:69]")
    allreduce2(40, 41, 42, 43, "v_max_f32")
    A(f"v_lshrrev_b32 v44, 5, v0\nv_lshlrev_b32 v44, 2, v44\ns_lshl_b32 s46, s61, 3\nv_add_u32 v44, s46, v44")
    A(f"ds_write_b32 v44, v42 offset:{L_M}")
    A(f"v_mov_b32 v38, 2\ns_waitcnt lgkmcnt(0)\nds_write_b32 v36, v38 offset:{L_XQ}")
    lds_wait4(L_XQ, 2, 52, 17)
    A(f"ds_read_b128 v[52:55], v17 offset:{L_M}\nds_read_b128 v[56:59], v17 offset:{L_M+16}\ns_waitcnt lgkmcnt(0)")
    A("v_max_f32 v52, v52, v54\nv_max3_f32 v52, v52, v56, v58\nv_max_f32 v53, v53, v55\nv_max3_f32 v53, v53, v57, v59")
    A("s_mov_b32 s47, 0x3db8aa3b")
    A("v_sub_f32 v40, v40, v52\nv_sub_f32 v41, v41, v53\nv_mul_f32 v40, s47, v40\nv_mul_f32 v41, s47, v41\nv_exp_f32 v40, v40\nv_exp_f32 v41, v41\ns_nop 0")
    A(f"v_cvt_pk_bf16_f32 v45, v40, v41\ns_lshl_b32 s46, s61, 7\ns_add_u32 s46, s46, {L_PB}\nv_lshlrev_b32 v46, 1, v0\nv_add_u32 v46, s46, v46")
    A("ds_write_b16 v46, v45\nds_write_b16_d16_hi v46, v45 offset:512")
    allreduce2(40, 41, 42, 43, "v_add_f32")
    A(f"ds_write_b32 v44, v42 offset:{L_L}")
    A(f"v_mov_b32 v38, 3\ns_waitcnt lgkmcnt(0)\nds_write_b32 v36, v38 offset:{L_XQ}")
    stamp(5)
    if abl == 3: A("s_endpgm")
    if abl == 4: A("s_cmp_eq_u32 s3, 4\ns_cbranch_scc1 L_END\ns_cmp_eq_u32 s3, 7\ns_cbranch_scc1 L_END")
    A("s_cmp_eq_u32 s3, 5\ns_cbranch_scc1 L_Y5\ns_cmp_eq_u32 s3, 6\ns_cbranch_scc1 L_Y6\ns_cmp_eq_u32 s3, 7\ns_cbranch_scc1 L_Y7")

    A("s_cmp_eq_u32 s29, 7\ns_cbranch_scc1 L_Y4END")
    A.srd(36, 12, 4096*448*2)
    A("v_mul_u32_u24 v3, 7168, v2\nv_lshl_add_u32 v3, v1, 4, v3")
    A("s_lshl_b32 s58, s28, 2\ns_add_u32 s58, s58, s30")
    A(f"s_mul_i32 s46, s58, {128*896}\ns_lshl_b32 s47, s29, 7\ns_add_u32 s59, s46, s47")
    A("v_lshlrev_b32 v4, 11, v16\nv_lshl_add_u32 v4, v7, 5, v4")
    A(f"s_lshl_b32 s60, s58, 14\ns_add_u32 s60, s60, {OP}")
    A(f"v_mul_u32_u24 v36, {28*2048}, v2\nv_lshrrev_b32 v37, 1, v1\nv_lshl_add_u32 v36, v37, 11, v36\nv_and_b32 v37, 1, v1\nv_lshl_add_u32 v36, v37, 5, v36")
    A(f"s_lshl_b32 s46, s29, 13\ns_lshl_b32 s47, s58, 6\ns_add_u32 s46, s46, s47\ns_add_u32 s62, s46, {FP}")
    A(f"s_mul_i32 s46, s28, 28\ns_lshl_b32 s47, s29, 2\ns_add_u32 s46, s46, s47\ns_add_u32 s46, s46, s30\ns_lshl_b32 s63, s46, 11\ns_add_u32 s63, s63, {FP}")
    A("v_lshlrev_b32 v37, 4, v0")
    A("v_lshlrev_b32 v38, 5, v0")
    lds_wait4(L_F, 3, 40, 17)
    WL = [64, 96]; WT = [128, 64]; G0 = 160
    for blk in range(2):
        A(f"s_add_u32 s46, s59, {blk*64*896}\ns_add_u32 s47, s46, 3584")
        for e in range(8):
            A(f"buffer_load_dwordx4 {vr(WL[blk]+4*e)}, v3, s[36:39], s{46 + (e&1)} offen offset:{(e>>1)*896}{wpol}")
    A("s_waitcnt vmcnt(8)")
    perms(WL[0], WT[0])
    A("s_waitcnt vmcnt(0)")
    perms(WL[1], WT[1])
    stamp(6)
    SUM = 96
    for k in range(16): A(f"v_mov_b32 v{SUM+k}, 0")
    groups = []
    for blk in range(2):
        for s_ in range(4):
            k = blk*4 + s_
            groups.append((64 + 2*k, [(G0 + k*8 + hh*4, s_*512 + blk*256 + hh*16) for hh in range(2)], SUM + 8*blk))
    lds_wait4(L_F, 4, 40, 17)
    prog_poll(groups, 4, 60, 39, sleep_o)
    stamp(7)
    for blk in range(2):
        g = SUM + blk*8
        for k in range(4): A(f"v_cvt_pk_bf16_f32 v{XA[blk]+k}, v{g+2*k}, v{g+2*k+1}")
    A("s_nop 1")
    for blk in range(2):
        mfma8(XACC, XA[blk], WT[blk], blk == 0)
    lds_wait1(17, L_W2F, 1, 40)
    A(f"ds_read_b128 v[40:43], v38 offset:{L_W2R}\nds_read_b128 v[44:47], v38 offset:{L_W2R+16}")
    A("s_nop 4")
    extract8(XACC, XRES, XTMP, 56)
    A("s_waitcnt lgkmcnt(0)")
    for k in range(8): A(f"v_add_f32 v{XRES+k}, v{XRES+k}, v{40+k}")
    tag(range(XRES, XRES+8), 18)
    A(f"buffer_store_dwordx4 {vr(XRES)}, v36, s[40:43], s62 offen sc1")
    A(f"buffer_store_dwordx4 {vr(XRES+4)}, v36, s[40:43], s62 offen offset:16 sc1")
    stamp(8)
    A.srd(36, 22, 7168)
    A("v_and_b32 v3, 3, v0\nv_lshlrev_b32 v3, 2, v3\nv_and_b32 v4, 1, v6\nv_lshl_add_u32 v3, v4, 1, v3\nv_lshrrev_b32 v4, 1, v6\nv_add_u32 v3, v3, v4\nv_lshlrev_b32 v3, 1, v3")
    A("v_cmp_gt_u32 vcc, 4, v5\ns_nop 1\nv_cndmask_b32 v3, v19, v3, vcc")
    A("s_mul_i32 s46, s28, 896\ns_lshl_b32 s47, s29, 7\ns_add_u32 s46, s46, s47\ns_lshl_b32 s47, s30, 5\ns_add_u32 s59, s46, s47")
    for k in range(4): A(f"v_mov_b32 v{40+k}, 0")
    prog_poll([(64, [(44, 0)], 40), (66, [(48, 1024)], 40)], 37, 63, 39, sleep_f)
    A("s_nop 1\nv_permlane32_swap_b32 v40, v41\nv_permlane32_swap_b32 v42, v43\ns_nop 1")
    A("v_add_f32 v40, v40, v41\nv_add_f32 v42, v42, v43\ns_nop 1\nv_permlane16_swap_b32 v40, v42\ns_nop 1\nv_add_f32 v40, v40, v42\ns_nop 1")
    A("v_add_f32_dpp v40, v40, v40 row_ror:4 row_mask:0xf bank_mask:0xf\ns_nop 1")
    A("v_add_f32_dpp v40, v40, v40 row_ror:8 row_mask:0xf bank_mask:0xf")
    A("v_cvt_pk_bf16_f32 v40, v40, v40")
    A("buffer_store_short v40, v3, s[36:39], s59 offen")
    A("s_cmp_lg_u32 s2, 0\ns_cbranch_scc1 L_Y4END")
    A(f"v_mov_b32 v40, s{S_TAG}\nv_cmp_eq_u32 vcc, 0, v0\ns_nop 1\nv_cndmask_b32 v3, v19, v17, vcc")
    A(f"buffer_store_dword v40, v3, s[40:43], 0 offen offset:{WOFF}")
    A.label("L_Y4END")
    if endat:
        A.label("L_EDL")
        A(f"s_memrealtime s[62:63]\ns_waitcnt lgkmcnt(0)\ns_sub_u32 s64, s62, s98\ns_cmp_lt_u32 s64, {endat}\ns_cbranch_scc1 L_EDL")
    if diag:
        stamp(9)
        stamp_store(24, [1, 2, 3, 4, 5, 6, 7, 8, 9])
    A("s_endpgm")

    A.label("L_Y5")
    A("s_cmp_ge_u32 s31, 28\ns_cbranch_scc1 L_END")
    A(f"s_lshl_b32 s46, s31, 14\ns_lshl_b32 s47, s29, 11\ns_add_u32 s46, s46, s47\ns_add_u32 s60, s46, {HP}")
    A(f"s_lshl_b32 s46, s31, 11\ns_lshl_b32 s47, s29, 8\ns_add_u32 s46, s46, s47\ns_add_u32 s59, s46, {HF}")
    A("v_lshlrev_b32 v3, 2, v0")
    A(f"ds_read_b64 v[52:53], v17 offset:{L_G}")
    lp = A.newlabel("HPOLL"); A.label(lp)
    for r in range(8): A(f"buffer_load_dword v{40+r}, v3, s[40:43], s60 offen offset:{r*256} sc1")
    A("s_waitcnt vmcnt(0) lgkmcnt(0)")
    msad(range(40, 48), 39)
    poll_tail(39, lp, 8)
    A("v_add_f32 v40, v40, v41\nv_add_f32 v42, v42, v43\nv_add_f32 v44, v44, v45\nv_add_f32 v46, v46, v47\nv_add_f32 v40, v40, v42\nv_add_f32 v44, v44, v46\nv_add_f32 v40, v40, v44")
    A("v_cvt_pk_bf16_f32 v40, v40, v40\nv_lshlrev_b32 v40, 16, v40")
    A("v_mul_f32 v41, 0xbfb8aa3b, v40\nv_exp_f32 v41, v41\ns_nop 0\nv_add_f32 v41, 1.0, v41\nv_rcp_f32 v41, v41\ns_nop 0\nv_mul_f32 v40, v40, v41")
    A("v_cvt_pk_bf16_f32 v40, v40, v40\nv_lshlrev_b32 v40, 16, v40\nv_mul_f32 v40, v40, v53")
    tag([40], 18)
    A("buffer_store_dword v40, v3, s[40:43], s59 offen sc1")
    A("s_endpgm")

    A.label("L_Y6")
    lds_wait4(L_XQ, 3, 40, 17)
    A(f"ds_read_b128 v[40:43], v17 offset:{L_L}\nds_read_b128 v[44:47], v17 offset:{L_L+16}\nds_read_b64 v[60:61], v17 offset:{L_G}\ns_waitcnt lgkmcnt(0)")
    A("v_add_f32 v40, v40, v42\nv_add_f32 v44, v44, v46\nv_add_f32 v40, v40, v44\nv_add_f32 v41, v41, v43\nv_add_f32 v45, v45, v47\nv_add_f32 v41, v41, v45")
    A("v_and_b32 v42, 1, v0\nv_cmp_eq_u32 vcc, 1, v42\ns_nop 1\nv_cndmask_b32 v44, v52, v53, vcc\nv_cndmask_b32 v46, v40, v41, vcc")
    A("v_lshlrev_b32 v45, 8, v44\nv_mov_b32 v47, v46")
    tag([44, 45, 46, 47], 18)
    A(f"s_lshl_b32 s46, s29, 3\ns_add_u32 s46, s46, s28\ns_lshl_b32 s46, s46, 8\ns_add_u32 s60, s46, {ML}\ns_lshl_b32 s47, s30, 6\ns_add_u32 s59, s60, s47")
    A("v_lshlrev_b32 v3, 4, v0\nv_cmp_gt_u32 vcc, 4, v0\ns_nop 1\nv_cndmask_b32 v4, v19, v3, vcc")
    A("buffer_store_dwordx4 v[44:47], v4, s[40:43], s59 offen sc1")
    A("v_and_b32 v3, 0xff, v3")
    lp = A.newlabel("MPOLL"); A.label(lp)
    A("buffer_load_dwordx4 v[44:47], v3, s[40:43], s60 offen sc1")
    A("s_waitcnt vmcnt(0)")
    msad(range(44, 48), 39)
    poll_tail(39, lp, 8)
    A("v_bfe_u32 v45, v45, 8, 8\nv_and_or_b32 v44, v44, v18, v45")
    A("v_mov_b32 v48, v44\ns_nop 1\nv_max_f32_dpp v48, v48, v48 row_ror:4 row_mask:0xf bank_mask:0xf\ns_nop 1\nv_max_f32_dpp v48, v48, v48 row_ror:8 row_mask:0xf bank_mask:0xf")
    A("s_mov_b32 s47, 0x3db8aa3b")
    A("v_sub_f32 v44, v44, v48\nv_mul_f32 v44, s47, v44\nv_exp_f32 v44, v44\ns_nop 0\nv_mul_f32 v46, v46, v44\ns_nop 1")
    A("v_add_f32_dpp v46, v46, v46 row_ror:4 row_mask:0xf bank_mask:0xf\ns_nop 1\nv_add_f32_dpp v46, v46, v46 row_ror:8 row_mask:0xf bank_mask:0xf")
    A("v_cmp_eq_u32 vcc, 1, v42\ns_nop 1\nv_cndmask_b32 v44, v52, v53, vcc")
    A("v_sub_f32 v44, v44, v48\nv_mul_f32 v44, s47, v44\nv_exp_f32 v44, v44\nv_rcp_f32 v46, v46\ns_nop 0\nv_mul_f32 v44, v44, v46\nv_mul_f32 v44, v44, v60")
    A(f"v_lshlrev_b32 v42, 2, v42\nds_write_b32 v42, v44 offset:{L_SC+8}")
    A(f"v_mov_b32 v38, 1\ns_waitcnt lgkmcnt(0)\nds_write_b32 v17, v38 offset:{L_SC}")
    if diag:
        stamp(6)
        stamp_store(36, [6])
    A("s_endpgm")

    A.label("L_Y7")
    A("s_cmp_eq_u32 s29, 7\ns_cbranch_scc1 L_END")
    A("v_lshlrev_b32 v38, 5, v0")
    A("s_cmp_ge_u32 s31, 28\ns_cbranch_scc1 L_Y7Z")
    A.srd(36, 18, 1792*448*2)
    A("v_mul_u32_u24 v3, 7168, v2\nv_lshl_add_u32 v3, v1, 4, v3")
    A(f"s_mul_i32 s46, s31, {64*896}\ns_lshl_b32 s47, s29, 7\ns_add_u32 s58, s46, s47\ns_add_u32 s59, s58, 3584")
    A("v_lshlrev_b32 v4, 8, v16\nv_lshl_add_u32 v4, v7, 5, v4")
    A(f"s_lshl_b32 s60, s31, 11\ns_add_u32 s60, s60, {HF}")
    lds_wait4(L_F, 3, 40, 17)
    for e in range(8):
        A(f"buffer_load_dwordx4 {vr(64+4*e)}, v3, s[36:39], s{58 + (e>>2)} offen offset:{(e&3)*896}{wpol}")
    lp = A.newlabel("H2POLL"); A.label(lp)
    A("buffer_load_dwordx4 v[40:43], v4, s[40:43], s60 offen sc1\nbuffer_load_dwordx4 v[44:47], v4, s[40:43], s60 offen offset:16 sc1")
    A("s_waitcnt vmcnt(0)")
    msad(range(40, 48), 39)
    poll_tail(39, lp, 4)
    for k in range(4): A(f"v_cvt_pk_bf16_f32 v{8+k}, v{40+2*k}, v{41+2*k}")
    perms(64, 96); A("s_nop 1")
    mfma8(XACC, 8, 96, True)
    A("s_nop 7")
    extract8(XACC, XRES, XTMP, 56)
    A.label("L_Y7W")
    A(f"ds_write_b128 v38, {vr(XRES)} offset:{L_W2R}\nds_write_b128 v38, {vr(XRES+4)} offset:{L_W2R+16}")
    A(f"v_mov_b32 v39, 1\ns_waitcnt lgkmcnt(0)\nds_write_b32 v17, v39 offset:{L_W2F}")
    A("s_endpgm")
    A.label("L_Y7Z")
    for k in range(8): A(f"v_mov_b32 v{XRES+k}, 0")
    A("s_branch L_Y7W")

    A.label("L_END")
    A("s_endpgm")
    tail = ['.section .rodata,"a"', ".p2align 6", f".amdhsa_kernel {NAME}_kernel",
            "  .amdhsa_next_free_vgpr 256", "  .amdhsa_next_free_sgpr 100", "  .amdhsa_accum_offset 256",
            "  .amdhsa_group_segment_fixed_size 0", "  .amdhsa_kernarg_size 96", "  .amdhsa_user_sgpr_count 2",
            "  .amdhsa_user_sgpr_kernarg_segment_ptr 1", "  .amdhsa_system_sgpr_workgroup_id_x 1",
            "  .amdhsa_float_denorm_mode_32 3", ".end_amdhsa_kernel"]
    return "\n".join(hdr + A.L + tail) + "\n"

if __name__ == "__main__":
    import argparse
    ap = argparse.ArgumentParser()
    ap.add_argument("-o", default="k.s")
    ap.add_argument("--D", type=int, default=6)
    ap.add_argument("--diag", action="store_true")
    ap.add_argument("--qgate", type=int, default=1)
    ap.add_argument("--VT", type=int, default=32)
    ap.add_argument("--so", action="store_true")
    ap.add_argument("--endat", type=int, default=0)
    ap.add_argument("--delay", type=int, default=0)
    ap.add_argument("--dbgst", action="store_true")
    ap.add_argument("--kvpol", default=" nt")
    ap.add_argument("--est", type=int, default=0)
    ap.add_argument("--abl", type=int, default=0)
    ap.add_argument("--wpol", default=" nt")
    ap.add_argument("--rotm", type=int, default=0)
    ap.add_argument("--mapm", type=int, default=0)
    a = ap.parse_args()
    open(a.o, "w").write(gen(D=a.D, diag=a.diag, qgate=a.qgate, VT=a.VT, so=a.so, rotm=a.rotm, mapm=a.mapm, abl=a.abl, endat=a.endat, delay=a.delay, dbgst=a.dbgst, kvpol=a.kvpol, est=a.est, wpol=a.wpol))
```
